```python
import torch

def _softmax(x, axis=-1):
    return torch.softmax(x, dim=axis)
def _gelu(x):
    return torch.nn.functional.gelu(x, approximate="tanh")
def _silu(x):
    return torch.nn.functional.silu(x)
def _sigmoid(x):
    return torch.sigmoid(x)
def _layernorm(x, axis=-1, eps=1e-5):
    m = x.mean(dim=axis, keepdim=True)
    v = x.var(dim=axis, keepdim=True, unbiased=False)
    return (x - m) / torch.sqrt(v + eps)
def _scatter_add(tgt, idx, src, axis=0):
    return tgt.clone().index_add_(axis, idx, src)
def _segment_sum(src, seg, n):
    out = torch.zeros((n,) + src.shape[1:], dtype=src.dtype)
    return out.index_add_(0, seg, src)
def _pad(x, pw):
    flat = tuple(v for pair in reversed(pw) for v in pair)
    return torch.nn.functional.pad(x, flat)

kernel_name = 'concat_heads__sliding_local_dilated__softmax_full_mha__prompt'

def setup_inputs():

    _w = (lambda a: (lambda t: t.to(torch.bfloat16) if t.is_floating_point() else t)(torch.as_tensor(a)))
    def _A_setup():
        B, S, D = 1, 2048, 448
        return {
            "x": _w((lambda *s: torch.randn(*s, dtype=torch.bfloat16) * 0.4)(B, S, D)),
            "wqkv": _w((lambda *s: torch.randn(*s, dtype=torch.bfloat16) * 0.8)(D, 3 * D)),
            "wo": _w((lambda *s: torch.randn(*s, dtype=torch.bfloat16) * 0.1)(D, D)),
        }
    _A_in = _A_setup()

    def _B_setup():
        B, S, D = 1, 2048, 448
        return {
            "x": _w((lambda *s: torch.randn(*s, dtype=torch.bfloat16) * 0.2)(B, S, D)),
            "wqkv": _w((lambda *s: torch.randn(*s, dtype=torch.bfloat16) * 0.8)(D, 3 * D)),
            "wo": _w((lambda *s: torch.randn(*s, dtype=torch.bfloat16) * 0.2)(D, D)),
        }
    _B_in = _B_setup()

    return {
        "A_x": _A_in["x"],
        "A_wqkv": _A_in["wqkv"],
        "A_wo": _A_in["wo"],
        "B_x": _B_in["x"],
        "B_wqkv": _B_in["wqkv"],
        "B_wo": _B_in["wo"],
    }

def reference(A_x, A_wqkv, A_wo, B_x, B_wqkv, B_wo):
    def _A_ref(x, wqkv, wo):
        B, S, D = x.shape
        H = 16; Dh = D // H
        W, dil = 8, 2
        qkv = (lambda x, *d: x.permute(*d))((x @ wqkv).reshape(B, S, 3, H, Dh), 2, 0, 3, 1, 4)
        q, k, v = qkv[0], qkv[1], qkv[2]
        scale = Dh ** -0.5
        pos = torch.arange(S)
        off = torch.arange(W) * dil
        idx = pos[:, None] - off[None, :]
        mask = idx >= 0
        idx_c = torch.where(mask, idx, 0).reshape(-1)
        kg = k[:, :, idx_c, :].reshape(B, H, S, W, Dh)
        vg = v[:, :, idx_c, :].reshape(B, H, S, W, Dh)
        logits = torch.einsum("bhsd,bhswd->bhsw", q, kg) * scale
        logits = torch.where(mask[None, None, :, :], logits, -1e9)
        attn = _softmax(logits, axis=-1)
        o = torch.einsum("bhsw,bhswd->bhsd", attn, vg)
        return (lambda x, *d: x.permute(*d))(o, 0, 2, 1, 3).reshape(B, S, D) @ wo

    def _B_ref(x, wqkv, wo):
        B, S, D = x.shape
        H = 16; Dh = D // H
        qkv = (lambda x, *d: x.permute(*d))((x @ wqkv).reshape(B, S, 3, H, Dh), 2, 0, 3, 1, 4)
        q, k, v = qkv[0], qkv[1], qkv[2]
        scale = Dh ** -0.5
        scores = torch.einsum("bhqd,bhkd->bhqk", q, k) * scale
        p = _softmax(scores, axis=-1)
        o = torch.einsum("bhqk,bhkd->bhqd", p, v)
        return (lambda x, *d: x.permute(*d))(o, 0, 2, 1, 3).reshape(B, S, D) @ wo

    a = _A_ref(A_x, A_wqkv, A_wo)
    b = _B_ref(B_x, B_wqkv, B_wo)
    return torch.concatenate([a, b], axis=-1)
```

```python
import struct, sys, math

NAME = "concat_heads__sliding_local_dilated__softmax_full_mha__prompt"

def f32(x):
    return "0x%08x" % struct.unpack("<I", struct.pack("<f", x))[0]

WS_T = lambda b, kind: (b * 3 + kind) * 0x200000
WS_O = lambda b: 0xC00000 + b * 0x200000
WS_SIZE = 0x1000000
QSCALE = (28.0 ** -0.5) * math.log2(math.e)
COFF = 32.0

class Asm:
    def __init__(self):
        self.lines = []
    def __call__(self, s=""):
        for l in s.split("\n"):
            self.lines.append("    " + l.strip() if l.strip() and not l.strip().endswith(":") else l.strip())
    def label(self, l):
        self.lines.append(l + ":")
    def text(self):
        return "\n".join(self.lines) + "\n"

def vr(b, n=1):
    return f"v{b}" if n == 1 else f"v[{b}:{b+n-1}]"
def ar(b, n=1):
    return f"a{b}" if n == 1 else f"a[{b}:{b+n-1}]"
def sr(b, n=1):
    return f"s{b}" if n == 1 else f"s[{b}:{b+n-1}]"

def srd(a, s, ptr, size):
    a(f"s_mov_b32 s{s}, s{ptr}")
    a(f"s_and_b32 s{s+1}, s{ptr+1}, 0xffff")
    a(f"s_mov_b32 s{s+2}, {size}")
    a(f"s_mov_b32 s{s+3}, 0x20000")

def header(a, name):
    a.lines.append(".text")
    a.lines.append(f".globl {name}")
    a.lines.append(".p2align 8")
    a.lines.append(f".type {name},@function")
    a.label(name)

def descriptor(name, vgpr, accum, sgpr=96):
    return f""".section .rodata,"a"
.p2align 6
.amdhsa_kernel {name}
  .amdhsa_next_free_vgpr {vgpr}
  .amdhsa_next_free_sgpr {sgpr}
  .amdhsa_accum_offset {accum}
  .amdhsa_group_segment_fixed_size 0
  .amdhsa_kernarg_size 72
  .amdhsa_user_sgpr_count 2
  .amdhsa_user_sgpr_kernarg_segment_ptr 1
  .amdhsa_system_sgpr_workgroup_id_x 1
.end_amdhsa_kernel
"""

MFMA32 = "v_mfma_f32_32x32x16_bf16"
MFMA16 = "v_mfma_f32_16x16x32_bf16"

def k1(st_flags=""):
    a = Asm()
    name = "qkv_kernel"
    header(a, name)
    BUF = 40960
    S_B, S_RB, S_HP, S_W = 3, 4, 5, 6
    SX, SW_, SWS = 8, 12, 16
    S_XM0, S_WM0 = 20, 21
    S_T0, S_T1, S_T2, S_T3 = 22, 23, 24, 25
    S_STEP = 26
    S_XOFF, S_WOFF = 27, 28
    S_ST = 29
    a("s_cmp_ge_u32 s2, 256")
    a("s_cbranch_scc1 L_k1_end")
    a("s_load_dwordx4 s[32:35], s[0:1], 0")
    a("s_load_dwordx4 s[36:39], s[0:1], 24")
    a("s_load_dwordx2 s[40:41], s[0:1], 64")
    a("v_lshrrev_b32 v1, 6, v0")
    a("v_and_b32 v0, 63, v0")
    a(f"v_readfirstlane_b32 s{S_W}, v1")
    a("s_and_b32 s22, s2, 7")
    a("s_lshr_b32 s23, s2, 3")
    a(f"s_lshr_b32 s{S_B}, s22, 2")
    a("s_and_b32 s24, s22, 3")
    a("s_lshr_b32 s25, s24, 1")
    a("s_lshl_b32 s25, s25, 3")
    a("s_and_b32 s26, s23, 7")
    a(f"s_add_u32 s{S_RB}, s25, s26")
    a("s_and_b32 s25, s24, 1")
    a("s_lshl_b32 s25, s25, 2")
    a("s_lshr_b32 s26, s23, 3")
    a(f"s_add_u32 s{S_HP}, s25, s26")
    a(f"s_lshr_b32 s22, s{S_W}, 1")
    a(f"s_and_b32 s23, s{S_W}, 1")
    a("s_lshl_b32 s24, s22, 5")
    a("s_lshl_b32 s25, s23, 4")
    a("s_add_u32 s24, s24, s25")
    a("s_lshr_b32 s25, s22, 1")
    a("s_lshl_b32 s25, s25, 6")
    a("s_and_b32 s26, s22, 1")
    a("s_add_u32 s25, s25, s26")
    a("s_lshl_b32 s26, s23, 5")
    a("s_add_u32 s25, s25, s26")
    a(f"s_cmp_eq_u32 s{S_B}, 0")
    a("s_cselect_b32 s24, s25, s24")
    a(f"s_sub_u32 s25, 1, s{S_B}")
    a(f"s_lshl_b32 s{S_STEP}, 896, s25")
    a(f"s_lshl_b32 s25, s{S_RB}, 7")
    a("s_add_u32 s24, s24, s25")
    a("s_mul_i32 s24, s24, 896")
    a("v_lshrrev_b32 v4, 3, v0")
    a(f"v_mul_lo_u32 v5, v4, s{S_STEP}")
    a("v_add_u32 v5, s24, v5")
    a("v_and_b32 v6, 7, v0")
    a("v_lshrrev_b32 v7, 4, v0")
    a("v_xor_b32 v8, v6, v7")
    a("v_lshl_add_u32 v2, v8, 4, v5")
    a("v_xor_b32 v8, 4, v8")
    a("v_lshl_add_u32 v3, v8, 4, v5")
    a(f"s_lshl_b32 s25, s{S_STEP}, 3")
    a("v_add_u32 v3, s25, v3")
    a(f"s_mul_i32 s25, s{S_HP}, 112")
    a("s_movk_i32 s42, 3121")
    a("s_movk_i32 s43, 2688")
    a("s_movk_i32 s44, 896")
    for n in range(3):
        a(f"s_lshl_b32 s26, s{S_W}, 6")
        a(f"s_add_u32 s26, s26, {512*n}")
        a("v_add_u32 v4, s26, v0")
        a("v_mul_lo_u32 v5, v4, s42")
        a("v_lshrrev_b32 v5, 16, v5")
        a("v_mul_u32_u24 v6, 21, v5")
        a("v_sub_u32 v6, v4, v6")
        a("v_mul_u32_u24 v7, 37, v6")
        a("v_lshrrev_b32 v7, 8, v7")
        a("v_mul_u32_u24 v8, 7, v7")
        a("v_sub_u32 v8, v6, v8")
        a("v_and_b32 v9, 0x30, v5")
        a("v_and_b32 v13, 3, v5")
        a("v_lshl_add_u32 v9, v13, 2, v9")
        a("v_bfe_u32 v13, v5, 2, 2")
        a("v_add_u32 v9, v9, v13")
        a("v_mul_lo_u32 v9, v9, s43")
        a("v_mul_lo_u32 v7, v7, s44")
        a("v_add_u32 v9, v9, v7")
        a("v_lshl_add_u32 v9, v8, 4, v9")
        a(f"v_add_u32 v{10+n}, s25, v9")
        if n == 2:
            a("v_cmp_gt_u32 vcc, 1344, v4")
            a("v_mov_b32 v13, 0x7f000000")
            a("s_nop 0")
            a("v_cndmask_b32 v12, v13, v12, vcc")
    a(f"s_lshl_b32 s{S_XM0}, s{S_W}, 11")
    a(f"s_lshl_b32 s{S_WM0}, s{S_W}, 10")
    a("s_waitcnt lgkmcnt(0)")
    a(f"s_cmp_eq_u32 s{S_B}, 0")
    a("s_cselect_b32 s32, s32, s36")
    a("s_cselect_b32 s33, s33, s37")
    a("s_cselect_b32 s34, s34, s38")
    a("s_cselect_b32 s35, s35, s39")
    srd(a, SX, 32, 2048 * 896)
    srd(a, SW_, 34, 448 * 2688)
    srd(a, SWS, 40, WS_SIZE)

    def dma(c):
        buf = (c % 4) * BUF
        a(f"s_movk_i32 s{S_XOFF}, {c*128}")
        a(f"s_mov_b32 s{S_WOFF}, {c*64*2688}")
        for e in range(2):
            a(f"s_add_u32 m0, s{S_XM0}, {buf + e*1024}")
            a("s_nop 0")
            a(f"buffer_load_dwordx4 v{2+e}, s[{SX}:{SX+3}], s{S_XOFF} offen lds")
        for n in range(3):
            a(f"s_add_u32 m0, s{S_WM0}, {buf + 16384 + n*8192}")
            a("s_nop 0")
            a(f"buffer_load_dwordx4 v{10+n}, s[{SW_}:{SW_+3}], s{S_WOFF} offen lds")
    for c in range(4):
        dma(c)
    a(f"s_and_b32 s22, s{S_W}, 3")
    a(f"s_lshr_b32 s23, s{S_W}, 2")
    a("v_and_b32 v4, 31, v0")
    a("v_lshrrev_b32 v5, 5, v0")
    a("v_bfe_u32 v6, v0, 1, 3")
    a("s_lshl_b32 s24, s22, 12")
    a("v_lshlrev_b32 v7, 7, v4")
    a("v_add_u32 v7, s24, v7")
    for ks in range(4):
        a(f"v_or_b32 v8, {2*ks}, v5")
        a("v_xor_b32 v8, v8, v6")
        a(f"v_lshl_add_u32 v{16+ks}, v8, 4, v7")
        a(f"v_add_u32 v{20+ks}, {2*BUF}, v{16+ks}")
    a("v_bfe_u32 v6, v0, 2, 2")
    a("v_lshlrev_b32 v6, 2, v6")
    a("v_lshl_add_u32 v6, v5, 1, v6")
    a("v_mul_u32_u24 v6, 336, v6")
    a("v_bfe_u32 v7, v0, 4, 1")
    a("v_lshl_add_u32 v6, v7, 5, v6")
    a("v_and_b32 v7, 3, v0")
    a("v_lshl_add_u32 v6, v7, 3, v6")
    a("s_mul_i32 s24, s23, 56")
    a("s_add_u32 s24, s24, 16384")
    a("v_add_u32 v24, s24, v6")
    a(f"v_add_u32 v25, {2*BUF}, v24")
    a(f"s_lshl_b32 s24, s{S_HP}, 1")
    a("s_add_u32 s24, s24, s23")
    a("s_lshl_b32 s24, s24, 17")
    a(f"s_lshl_b32 s25, s{S_RB}, 2")
    a("s_add_u32 s25, s25, s22")
    a("s_lshl_b32 s25, s25, 11")
    a("s_add_u32 s24, s24, s25")
    a(f"s_mul_i32 s25, s{S_B}, {3*0x200000}")
    a(f"s_add_u32 s{S_ST}, s24, s25")
    a("v_lshlrev_b32 v1, 4, v0")
    ACC = 32
    XF = 80
    WF = 88
    for i in range(48):
        a(f"v_mov_b32 v{ACC+i}, 0")
    def reads(c, ks):
        st = ks % 2
        hi = (c % 4) // 2
        bo = (c % 2) * BUF
        a(f"ds_read_b128 {vr(XF+4*st,4)}, v{16+ks+4*hi} offset:{bo}")
        for seg in range(3):
            for t in range(2):
                a(f"ds_read_b64_tr_b16 {vr(WF+12*st+4*seg+2*t,2)}, v{24+hi} offset:{bo + ks*5376 + t*336 + seg*112}")
    def mfmas(ks):
        st = ks % 2
        x = vr(XF+4*st, 4)
        for seg in range(3):
            w = vr(WF+12*st+4*seg, 4)
            d = vr(ACC+16*seg, 16)
            if seg < 2:
                a(f"{MFMA32} {d}, {w}, {x}, {d}")
            else:
                a(f"{MFMA32} {d}, {x}, {w}, {d}")
    waits = [15, 10, 10, 10, 10, 5, 0]
    for c in range(7):
        a(f"s_waitcnt vmcnt({waits[c]})")
        a("s_barrier")
        reads(c, 0)
        reads(c, 1)
        if 1 <= c <= 3:
            dma(c + 3)
        a("s_waitcnt lgkmcnt(7)")
        mfmas(0)
        reads(c, 2)
        a("s_waitcnt lgkmcnt(7)")
        mfmas(1)
        reads(c, 3)
        a("s_waitcnt lgkmcnt(7)")
        mfmas(2)
        a("s_waitcnt lgkmcnt(0)")
        mfmas(3)
    QF, KF, VF, SD = 80, 88, 96, 104
    a(f"s_mov_b32 s30, {f32(QSCALE)}")
    a("s_nop 7")
    a("s_nop 3")
    for i in range(16):
        a(f"v_mul_f32 v{ACC+i}, s30, v{ACC+i}")
    for i in range(8):
        a(f"v_cvt_pk_bf16_f32 v{QF+i}, v{ACC+2*i}, v{ACC+2*i+1}")
    for i in range(8):
        a(f"v_cvt_pk_bf16_f32 v{KF+i}, v{ACC+16+2*i}, v{ACC+16+2*i+1}")
    a("s_mov_b32 exec_lo, 0")
    a(f"v_mov_b32 v{QF+6}, 0")
    a(f"v_mov_b32 v{QF+7}, 0")
    a(f"v_mov_b32 v{KF+6}, 0x3f80")
    a(f"v_mov_b32 v{KF+7}, 0")
    a("s_mov_b32 exec_lo, -1")
    a(f"s_add_u32 s31, s{S_ST}, 0x200000")
    a("s_nop 0")
    a(f"{MFMA32} {vr(SD,16)}, {vr(KF,4)}, {vr(QF,4)}, 0")
    a(f"{MFMA32} {vr(SD,16)}, {vr(KF+4,4)}, {vr(QF+4,4)}, {vr(SD,16)}")
    a(f"buffer_store_dwordx4 {vr(KF,4)}, v1, s[{SWS}:{SWS+3}], s31 offen {st_flags}")
    a(f"buffer_store_dwordx4 {vr(KF+4,4)}, v1, s[{SWS}:{SWS+3}], s31 offen offset:1024 {st_flags}")
    for i in range(8):
        a(f"v_cvt_pk_bf16_f32 v{VF+i}, v{ACC+32+2*i}, v{ACC+32+2*i+1}")
    a("s_mov_b32 exec_lo, 0x10000000")
    a("s_mov_b32 exec_hi, 0x10000000")
    for i in range(8):
        a(f"v_mov_b32 v{VF+i}, 0x3f803f80")
    a("s_mov_b32 exec_lo, 0xe0000000")
    a("s_mov_b32 exec_hi, 0xe0000000")
    for i in range(8):
        a(f"v_mov_b32 v{VF+i}, 0")
    a("s_mov_b64 exec, -1")
    a(f"s_add_u32 s31, s{S_ST}, 0x400000")
    a(f"buffer_store_dwordx4 {vr(VF,4)}, v1, s[{SWS}:{SWS+3}], s31 offen {st_flags}")
    a(f"buffer_store_dwordx4 {vr(VF+4,4)}, v1, s[{SWS}:{SWS+3}], s31 offen offset:1024 {st_flags}")
    a(f"v_max3_f32 v4, v{SD}, v{SD+1}, v{SD+2}")
    for i in range(6):
        a(f"v_max3_f32 v4, v4, v{SD+3+2*i}, v{SD+4+2*i}")
    a(f"v_max_f32 v4, v4, v{SD+15}")
    a("v_mov_b32 v5, v4")
    a("s_nop 1")
    a("v_permlane32_swap_b32 v4, v5")
    a("s_nop 1")
    a("v_max_f32 v4, v4, v5")
    a(f"v_sub_f32 v4, {f32(-COFF)}, v4")
    a("v_mov_b32 v5, 0")
    a("s_mov_b32 exec_lo, 0")
    a(f"v_cvt_pk_bf16_f32 v{QF+6}, v4, v5")
    a("s_mov_b32 exec_lo, -1")
    a(f"buffer_store_dwordx4 {vr(QF,4)}, v1, s[{SWS}:{SWS+3}], s{S_ST} offen {st_flags}")
    a(f"buffer_store_dwordx4 {vr(QF+4,4)}, v1, s[{SWS}:{SWS+3}], s{S_ST} offen offset:1024 {st_flags}")
    a.label("L_k1_end")
    a("s_endpgm")
    return a.text() + descriptor(name, 120, 120), (name, 256, 512, 4 * BUF)

def k2(st_flags=""):
    a = Asm()
    name = "attn_kernel"
    header(a, name)
    SWS = 8
    S_W, S_HEAD, S_QB = 3, 4, 5
    S_K, S_V = 12, 13
    S_IT = 14
    Q, O, S, P, KV = 0, 32, 96, 128, 144
    OA = 208
    VL = 224
    T0, T1, T2, T3 = 225, 226, 227, 228
    PA = 232
    VID = 244
    a("s_cmp_ge_u32 s2, 256")
    a("s_cbranch_scc1 L_k2_end")
    a("s_load_dwordx2 s[40:41], s[0:1], 64")
    a(f"v_lshrrev_b32 v{T0}, 6, v0")
    a(f"v_and_b32 v{VID}, 63, v0")
    a(f"v_readfirstlane_b32 s{S_W}, v{T0}")
    a(f"v_lshlrev_b32 v{VL}, 4, v{VID}")
    a("s_and_b32 s22, s2, 7")
    a("s_lshr_b32 s23, s2, 3")
    a("s_lshl_b32 s22, s22, 1")
    a("s_lshr_b32 s24, s23, 4")
    a(f"s_add_u32 s{S_HEAD}, s22, s24")
    a(f"s_and_b32 s{S_QB}, s23, 15")
    a(f"s_lshl_b32 s22, s{S_HEAD}, 17")
    a(f"s_lshl_b32 s23, s{S_QB}, 2")
    a(f"s_add_u32 s23, s23, s{S_W}")
    a("s_sub_u32 s24, s23, 2")
    a("s_cmp_lt_u32 s23, 2")
    a("s_cselect_b32 s24, s23, s24")
    a("s_cselect_b32 s30, 0, -1")
    a("s_lshl_b32 s25, s23, 11")
    a("s_add_u32 s25, s25, s22")
    a("s_lshl_b32 s24, s24, 11")
    a("s_add_u32 s24, s24, s22")
    a(f"s_add_u32 s26, s25, {WS_T(0,1)}")
    a(f"s_add_u32 s27, s24, {WS_T(0,1)}")
    a(f"s_add_u32 s28, s25, {WS_T(0,2)}")
    a(f"s_add_u32 s29, s24, {WS_T(0,2)}")
    a("s_lshl_b32 s31, s23, 15")
    a(f"s_lshl_b32 s32, s{S_HEAD}, 11")
    a("s_add_u32 s31, s31, s32")
    a(f"s_add_u32 s32, s31, {WS_O(1)}")
    a(f"s_add_u32 s31, s31, {WS_O(0)}")
    a(f"s_lshl_b32 s33, s{S_W}, 15")
    a("s_add_u32 s33, s33, s22")
    a(f"s_add_u32 s{S_K}, s33, {WS_T(1,1)}")
    a(f"s_add_u32 s{S_V}, s33, {WS_T(1,2)}")
    a("s_waitcnt lgkmcnt(0)")
    srd(a, SWS, 40, WS_SIZE)
    W = f"s[{SWS}:{SWS+3}]"
    def ld(dst, soff, imm):
        o = f" offset:{imm}" if imm else ""
        a(f"buffer_load_dwordx4 {dst}, v{VL}, {W}, s{soff} offen{o}")
    ld(ar(0,4), 25, 0); ld(ar(4,4), 25, 1024)
    ld(ar(8,4), 26, 0); ld(ar(12,4), 26, 1024)
    ld(ar(16,4), 27, 0); ld(ar(20,4), 27, 1024)
    ld(ar(24,4), 28, 0); ld(ar(28,4), 28, 1024)
    ld(ar(32,4), 29, 1024)
    for q in range(4):
        a(f"s_add_u32 s34, s{S_W}, {q}")
        a("s_and_b32 s34, s34, 3")
        a(f"s_lshl_b32 s35, s{S_QB}, 2")
        a("s_add_u32 s34, s34, s35")
        a("s_lshl_b32 s34, s34, 11")
        a("s_add_u32 s34, s34, s22")
        a(f"s_add_u32 s34, s34, {WS_T(1,0)}")
        ld(vr(Q+8*q,4), 34, 0); ld(vr(Q+8*q+4,4), 34, 1024)
    def Kreg(b, m): return vr(KV + 16*b + 4*m, 4)
    def Vreg(b, m): return vr(KV + 16*b + 8 + 4*m, 4)
    a(f"s_add_u32 s34, s{S_K}, 4096")
    a(f"s_add_u32 s35, s{S_V}, 4096")
    for t in range(4):
        sk = S_K if t < 2 else 34
        sv = S_V if t < 2 else 35
        ld(Kreg(t,0), sk, (t%2)*2048); ld(Kreg(t,1), sk, (t%2)*2048+1024)
        if t < 3:
            ld(Vreg(t,0), sv, (t%2)*2048); ld(Vreg(t,1), sv, (t%2)*2048+1024)
    NEG = f32(-1e30)
    a(f"v_mov_b32 v{T0}, {NEG}")
    def lanemask(fn):
        m = 0
        for l in range(64):
            if fn(l & 31, l >> 5): m |= 1 << l
        return m
    for r in range(16):
        m = lanemask(lambda i, h: 0 <= i - (8*(r//4) + 4*h + r%4) <= 7)
        a(f"s_mov_b32 s36, 0x{m & 0xffffffff:x}")
        a(f"s_mov_b32 s37, 0x{m >> 32:x}")
        a(f"v_cndmask_b32 v{S+r}, v{T0}, 0, s[36:37]")
    for r in range(12, 16):
        m = lanemask(lambda i, h: (24 + 4*h + r - 12) >= i + 25)
        a(f"s_and_b32 s36, s30, 0x{m & 0xffffffff:x}")
        a(f"s_and_b32 s37, s30, 0x{m >> 32:x}")
        a(f"v_cndmask_b32 v{S+16+r}, v{T0}, 0, s[36:37]")
    for r in range(12):
        a(f"v_mov_b32 v{S+16+r}, 0")
    for i in range(64):
        a(f"v_mov_b32 v{O+i}, 0")
    for i in range(8):
        a(f"v_mov_b32 v{P+8+i}, 0")
        a(f"v_mov_b32 v{KV+48+8+i}, 0")
    a(f"v_mov_b32 v{PA+8}, 0")
    a(f"v_mov_b32 v{PA+9}, 0")
    nB = 8 + 14
    a(f"s_waitcnt vmcnt({nB+3})")
    a(f"{MFMA32} {vr(S,16)}, {ar(8,4)}, {ar(0,4)}, {vr(S,16)}")
    a(f"{MFMA32} {vr(S,16)}, {ar(12,4)}, {ar(4,4)}, {vr(S,16)}")
    a(f"{MFMA32} {vr(S+16,16)}, {ar(16,4)}, {ar(0,4)}, {vr(S+16,16)}")
    a(f"{MFMA32} {vr(S+16,16)}, {ar(20,4)}, {ar(4,4)}, {vr(S+16,16)}")
    a("s_nop 7"); a("s_nop 2")
    a(f"v_max3_f32 v{T0}, v{S}, v{S+1}, v{S+2}")
    for i in range(6):
        a(f"v_max3_f32 v{T0}, v{T0}, v{S+3+2*i}, v{S+4+2*i}")
    a(f"v_max3_f32 v{T0}, v{T0}, v{S+15}, v{S+28}")
    a(f"v_max3_f32 v{T0}, v{T0}, v{S+29}, v{S+30}")
    a(f"v_max_f32 v{T0}, v{T0}, v{S+31}")
    a(f"v_mov_b32 v{T1}, v{T0}")
    a("s_nop 1")
    a(f"v_permlane32_swap_b32 v{T0}, v{T1}")
    a("s_nop 1")
    a(f"v_max_f32 v{T0}, v{T0}, v{T1}")
    regs = list(range(16)) + [28, 29, 30, 31]
    for r in regs:
        a(f"v_sub_f32 v{S+r}, v{S+r}, v{T0}")
    for r in regs:
        a(f"v_exp_f32 v{S+r}, v{S+r}")
    for i in range(8):
        a(f"v_cvt_pk_bf16_f32 v{PA+i}, v{S+2*i}, v{S+2*i+1}")
    a(f"v_cvt_pk_bf16_f32 v{PA+10}, v{S+28}, v{S+29}")
    a(f"v_cvt_pk_bf16_f32 v{PA+11}, v{S+30}, v{S+31}")
    a(f"s_waitcnt vmcnt({nB})")
    a(f"{MFMA32} {vr(OA,16)}, {ar(24,4)}, {vr(PA,4)}, 0")
    a(f"{MFMA32} {vr(OA,16)}, {ar(28,4)}, {vr(PA+4,4)}, {vr(OA,16)}")
    a(f"{MFMA32} {vr(OA,16)}, {ar(32,4)}, {vr(PA+8,4)}, {vr(OA,16)}")
    a("s_waitcnt vmcnt(12)")
    a(f"{MFMA32} {vr(S,16)}, {Kreg(0,0)}, {vr(Q,4)}, 0")
    a(f"{MFMA32} {vr(S,16)}, {Kreg(0,1)}, {vr(Q+4,4)}, {vr(S,16)}")
    a("s_nop 7"); a("s_nop 1")
    def finalize(Ob, soff, Pk):
        a(f"v_mov_b32 v{T0}, v{Ob+12}")
        a(f"v_mov_b32 v{T1}, v{Ob+12}")
        a("s_nop 1")
        a(f"v_permlane32_swap_b32 v{T0}, v{T1}")
        a("s_nop 1")
        a(f"v_rcp_f32 v{T1}, v{T1}")
        a("s_nop 0")
        for i in range(16):
            a(f"v_mul_f32 v{Ob+i}, v{Ob+i}, v{T1}")
        for i in range(8):
            a(f"v_cvt_pk_bf16_f32 v{Pk+i}, v{Ob+2*i}, v{Ob+2*i+1}")
        a("s_mov_b32 exec_lo, 0")
        a(f"v_mov_b32 v{Pk+6}, 0")
        a(f"v_mov_b32 v{Pk+7}, 0")
        a("s_mov_b32 exec_lo, -1")
        a(f"buffer_store_dwordx4 {vr(Pk,4)}, v{VL}, {W}, s{soff} offen {st_flags}")
        a(f"buffer_store_dwordx4 {vr(Pk+4,4)}, v{VL}, {W}, s{soff} offen offset:1024 {st_flags}")
    finalize(OA, 31, PA)
    a(f"s_add_u32 s{S_K}, s{S_K}, {4*2048}")
    a(f"s_add_u32 s{S_V}, s{S_V}, {3*2048}")
    a(f"s_mov_b32 s{S_IT}, 0")
    a("s_mov_b32 s38, 0x7f000000")
    a.label("L_k2_loop")
    a(f"s_cmp_eq_u32 s{S_IT}, 3")
    a(f"s_cselect_b32 s34, s38, s{S_K}")
    a("s_add_u32 s35, s34, 4096")
    a(f"s_add_u32 s36, s{S_V}, 2048")
    a(f"s_cmp_eq_u32 s{S_IT}, 3")
    a("s_cselect_b32 s36, s38, s36")
    a("s_add_u32 s37, s36, 4096")
    for kt in range(4):
        for q in range(4):
            u = kt*4 + q
            sb = S + 16*(u % 2)
            sn = S + 16*((u+1) % 2)
            pb = P + 8*(u % 2)
            pp = P + 8*((u+1) % 2)
            nk, nq = divmod(u + 1, 4); nk %= 4
            pk_, pq = divmod(u - 1, 4); pk_ %= 4
            ms = [
                f"{MFMA32} {vr(sn,16)}, {Kreg(nk,0)}, {vr(Q+8*nq,4)}, 0",
                f"{MFMA32} {vr(sn,16)}, {Kreg(nk,1)}, {vr(Q+8*nq+4,4)}, {vr(sn,16)}",
                f"{MFMA32} {vr(O+16*pq,16)}, {Vreg(pk_,0)}, {vr(pp,4)}, {vr(O+16*pq,16)}",
                f"{MFMA32} {vr(O+16*pq,16)}, {Vreg(pk_,1)}, {vr(pp+4,4)}, {vr(O+16*pq,16)}",
            ]
            if q == 3:
                a("s_waitcnt vmcnt(10)")
            for g in range(4):
                if q == 1 and g == 2:
                    a("s_waitcnt vmcnt(10)")
                a(ms[g])
                if q == 3 and g == 1:
                    pass
                for e in range(4):
                    a(f"v_exp_f32 v{sb+4*g+e}, v{sb+4*g+e}")
                a(f"v_cvt_pk_bf16_f32 v{pb+2*g}, v{sb+4*g}, v{sb+4*g+1}")
                a(f"v_cvt_pk_bf16_f32 v{pb+2*g+1}, v{sb+4*g+2}, v{sb+4*g+3}")
                if q == 3 and g == 0:
                    sk = 34 if kt < 2 else 35
                    ld(Kreg(kt,0), sk, (kt%2)*2048); ld(Kreg(kt,1), sk, (kt%2)*2048+1024)
                if q == 1 and g == 2:
                    b = (kt + 3) % 4
                    if kt == 0:
                        ld(Vreg(b,0), S_V, 0); ld(Vreg(b,1), S_V, 1024)
                    elif kt < 3:
                        ld(Vreg(b,0), 36, (kt-1)*2048); ld(Vreg(b,1), 36, (kt-1)*2048+1024)
                    else:
                        ld(Vreg(b,0), 37, 0); ld(Vreg(b,1), 37, 1024)
    a(f"s_add_u32 s{S_K}, s{S_K}, {4*2048}")
    a(f"s_add_u32 s{S_V}, s{S_V}, {4*2048}")
    a(f"s_add_u32 s{S_IT}, s{S_IT}, 1")
    a(f"s_cmp_lt_u32 s{S_IT}, 4")
    a("s_cbranch_scc1 L_k2_loop")
    a(f"{MFMA32} {vr(O+48,16)}, {Vreg(3,0)}, {vr(P+8,4)}, {vr(O+48,16)}")
    a(f"{MFMA32} {vr(O+48,16)}, {Vreg(3,1)}, {vr(P+12,4)}, {vr(O+48,16)}")
    for q in range(1, 4):
        a(f"s_add_u32 s34, s{S_W}, {q}")
        a("s_and_b32 s34, s34, 3")
        a("s_mul_i32 s34, s34, 12288")
        a(f"v_add_u32 v{T0+q}, s34, v{VL}")
    for q in range(1, 4):
        if q == 3:
            a("s_nop 4")
        for rq in range(4):
            a(f"ds_write_b128 v{T0+q}, {vr(O+16*q+4*rq,4)} offset:{(q-1)*4096 + rq*1024}")
    a(f"s_mul_i32 s34, s{S_W}, 12288")
    a(f"v_add_u32 v{T0}, s34, v{VL}")
    a("s_waitcnt lgkmcnt(0)")
    a("s_barrier")
    for j in range(12):
        a(f"ds_read_b128 {vr(O+16+4*j,4)}, v{T0} offset:{j*1024}")
    for s_ in range(3):
        a(f"s_waitcnt lgkmcnt({8-4*s_})")
        for i in range(16):
            a(f"v_add_f32 v{O+i}, v{O+i}, v{O+16+16*s_+i}")
    a(f"v_mul_f32 v{T0}, 0, v{O}")
    for i in range(1, 16):
        a(f"v_fma_f32 v{T0}, 0, v{O+i}, v{T0}")
    a(f"v_cmp_u_f32 vcc, v{T0}, v{T0}")
    a(f"s_mov_b32 s34, {f32(2.0**-60)}")
    a(f"v_cmp_nge_f32 s[36:37], v{O+12}, s34")
    a("s_nop 1")
    a("s_mov_b32 s36, 0")
    a("s_or_b64 vcc, vcc, s[36:37]")
    a("s_cbranch_vccnz L_k2_slow")
    a.label("L_k2_fin")
    finalize(O, 32, P)
    a.label("L_k2_end")
    a("s_endpgm")
    a.label("L_k2_slow")
    M = T2
    a("s_waitcnt vmcnt(0)")
    a(f"s_lshl_b32 s34, s{S_HEAD}, 17")
    a(f"s_add_u32 s35, s34, {WS_T(1,2)}")
    a(f"s_add_u32 s34, s34, {WS_T(1,1)}")
    a(f"v_mov_b32 v{M}, 0xff800000")
    for i in range(16):
        a(f"v_mov_b32 v{O+i}, 0")
    a(f"s_mov_b32 s{S_IT}, 0")
    a.label("L_k2_slow_loop")
    ld(Kreg(0,0), 34, 0); ld(Kreg(0,1), 34, 1024)
    ld(Vreg(0,0), 35, 0); ld(Vreg(0,1), 35, 1024)
    a("s_waitcnt vmcnt(0)")
    a(f"{MFMA32} {vr(S,16)}, {Kreg(0,0)}, {vr(Q,4)}, 0")
    a(f"{MFMA32} {vr(S,16)}, {Kreg(0,1)}, {vr(Q+4,4)}, {vr(S,16)}")
    a("s_nop 7"); a("s_nop 4")
    a(f"v_max3_f32 v{T0}, v{S}, v{S+1}, v{M}")
    for i in range(7):
        a(f"v_max3_f32 v{T0}, v{T0}, v{S+2+2*i}, v{S+3+2*i}")
    a(f"v_mov_b32 v{T1}, v{T0}")
    a("s_nop 1")
    a(f"v_permlane32_swap_b32 v{T0}, v{T1}")
    a("s_nop 1")
    a(f"v_max_f32 v{T0}, v{T0}, v{T1}")
    a(f"v_sub_f32 v{T1}, v{M}, v{T0}")
    a(f"v_exp_f32 v{T1}, v{T1}")
    a(f"v_mov_b32 v{M}, v{T0}")
    for i in range(16):
        a(f"v_mul_f32 v{O+i}, v{O+i}, v{T1}")
    for i in range(16):
        a(f"v_sub_f32 v{S+i}, v{S+i}, v{M}")
    for i in range(16):
        a(f"v_exp_f32 v{S+i}, v{S+i}")
    a("s_nop 0")
    for i in range(8):
        a(f"v_cvt_pk_bf16_f32 v{P+i}, v{S+2*i}, v{S+2*i+1}")
    a("s_nop 1")
    a(f"{MFMA32} {vr(O,16)}, {Vreg(0,0)}, {vr(P,4)}, {vr(O,16)}")
    a(f"{MFMA32} {vr(O,16)}, {Vreg(0,1)}, {vr(P+4,4)}, {vr(O,16)}")
    a("s_add_u32 s34, s34, 2048")
    a("s_add_u32 s35, s35, 2048")
    a(f"s_add_u32 s{S_IT}, s{S_IT}, 1")
    a("s_nop 7"); a("s_nop 4")
    a(f"s_cmp_lt_u32 s{S_IT}, 64")
    a("s_cbranch_scc1 L_k2_slow_loop")
    a("s_branch L_k2_fin")
    return a.text() + descriptor(name, 256 + 40, 256), (name, 256, 256, 49152)

def k3():
    a = Asm()
    name = "oproj_kernel"
    header(a, name)
    SWS, SWO, SOUT = 8, 12, 16
    S_W, S_B, S_RBK, S_CG = 3, 4, 5, 6
    a("s_cmp_ge_u32 s2, 256")
    a("s_cbranch_scc1 L_k3_end")
    a("s_load_dwordx2 s[32:33], s[0:1], 16")
    a("s_load_dwordx4 s[36:39], s[0:1], 40")
    a("s_load_dwordx2 s[40:41], s[0:1], 64")
    a("v_lshrrev_b32 v1, 6, v0")
    a("v_and_b32 v0, 63, v0")
    a(f"v_readfirstlane_b32 s{S_W}, v1")
    a("s_and_b32 s22, s2, 7")
    a("s_lshr_b32 s23, s2, 3")
    a(f"s_lshr_b32 s{S_B}, s22, 2")
    a("s_and_b32 s24, s22, 3")
    a("s_lshl_b32 s24, s24, 3")
    a("s_and_b32 s25, s23, 7")
    a(f"s_add_u32 s{S_RBK}, s24, s25")
    a(f"s_lshr_b32 s{S_CG}, s23, 3")
    a(f"s_and_b32 s22, s{S_W}, 1")
    a(f"s_lshr_b32 s23, s{S_W}, 1")
    a("v_lshrrev_b32 v3, 5, v0")
    a("v_lshlrev_b32 v2, 10, v3")
    a("v_bfe_u32 v3, v0, 4, 1")
    a("v_lshl_add_u32 v2, v3, 9, v2")
    a("v_and_b32 v3, 15, v0")
    a("v_lshl_add_u32 v2, v3, 4, v2")
    a("s_lshl_b32 s24, s22, 8")
    a("v_add_u32 v2, s24, v2")
    a(f"s_lshl_b32 s24, s{S_RBK}, 1")
    a("s_add_u32 s24, s24, s23")
    a("s_lshl_b32 s25, s24, 15")
    a(f"s_lshl_b32 s26, s{S_B}, 21")
    a("s_add_u32 s25, s25, s26")
    a(f"s_add_u32 s25, s25, {WS_O(0)}")
    a(f"s_mul_i32 s26, s{S_CG}, 224")
    a("s_movk_i32 s42, 4682")
    a("s_movk_i32 s43, 896")
    for n in range(7):
        a(f"s_lshl_b32 s27, s{S_W}, 6")
        a(f"s_add_u32 s27, s27, {256*n}")
        a("v_add_u32 v11, s27, v0")
        a("v_mul_lo_u32 v12, v11, s42")
        a("v_lshrrev_b32 v12, 16, v12")
        a("v_mul_u32_u24 v13, 14, v12")
        a("v_sub_u32 v13, v11, v13")
        a("v_mul_lo_u32 v12, v12, s43")
        a("v_lshl_add_u32 v12, v13, 4, v12")
        a(f"v_add_u32 v{4+n}, s26, v12")
    a(f"s_lshl_b32 s28, s{S_W}, 10")
    a("s_waitcnt lgkmcnt(0)")
    a(f"s_cmp_eq_u32 s{S_B}, 0")
    a("s_cselect_b32 s32, s32, s36")
    a("s_cselect_b32 s33, s33, s37")
    srd(a, SWO, 32, 448 * 896)
    srd(a, SOUT, 38, 2048 * 1792)
    srd(a, SWS, 40, WS_SIZE)
    OF = 32
    ACC = 96
    WF = 124
    stages = [range(0, 4), range(4, 9), range(9, 13), range(13, 16)]
    for s_, hs in enumerate(stages):
        for hd in hs:
            if hd % 2 == 0 or hd == hs[0]:
                a(f"s_add_u32 s27, s25, {(hd//2)*4096}")
            o = f" offset:2048" if hd % 2 else ""
            a(f"buffer_load_dwordx4 {vr(OF+4*hd,4)}, v2, s[{SWS}:{SWS+3}], s27 offen{o}")
        a(f"s_mov_b32 s27, {s_*128*896}")
        for n in range(7 if s_ < 3 else 4):
            a(f"s_add_u32 m0, s28, {(s_*28 + 4*n)*1024}")
            a("s_nop 0")
            a(f"buffer_load_dwordx4 v{4+n}, s[{SWO}:{SWO+3}], s27 offen lds")
    a("v_lshrrev_b32 v11, 5, v0")
    a("v_lshlrev_b32 v11, 4, v11")
    a("v_bfe_u32 v12, v0, 4, 1")
    a("v_lshl_add_u32 v11, v12, 2, v11")
    a("v_bfe_u32 v12, v0, 2, 2")
    a("v_add_u32 v11, v11, v12")
    a("v_mul_u32_u24 v11, 224, v11")
    a("v_and_b32 v12, 3, v0")
    a("v_lshl_add_u32 v14, v12, 3, v11")
    a(f"v_add_u32 v15, {8*6272}, v14")
    for i in range(28):
        a(f"v_mov_b32 v{ACC+i}, 0")
    EP = 102400
    a(f"s_mul_i32 s27, s{S_W}, 3584")
    a(f"s_add_u32 s27, s27, {EP}")
    a("v_and_b32 v11, 15, v0")
    a("v_mul_u32_u24 v11, 224, v11")
    a("v_lshrrev_b32 v12, 4, v0")
    a("v_lshl_add_u32 v11, v12, 3, v11")
    a("v_add_u32 v16, s27, v11")
    a("v_lshlrev_b32 v11, 4, v0")
    a("v_add_u32 v17, s27, v11")
    a("s_lshl_b32 s27, s24, 5")
    a("s_lshl_b32 s29, s22, 4")
    a("s_add_u32 s27, s27, s29")
    a("s_lshr_b32 s29, s24, 1")
    a("s_lshl_b32 s29, s29, 6")
    a("s_and_b32 s30, s24, 1")
    a("s_add_u32 s29, s29, s30")
    a("s_lshl_b32 s30, s22, 5")
    a("s_add_u32 s29, s29, s30")
    a(f"s_cmp_eq_u32 s{S_B}, 0")
    a("s_cselect_b32 s27, s29, s27")
    a(f"s_sub_u32 s29, 1, s{S_B}")
    a("s_lshl_b32 s29, 1792, s29")
    a("s_mul_i32 s27, s27, 1792")
    a(f"s_mul_i32 s30, s{S_B}, 896")
    a("s_add_u32 s27, s27, s30")
    a("s_add_u32 s27, s27, s26")
    for n in range(4):
        a(f"v_add_u32 v11, {64*n}, v0")
        a("v_mul_lo_u32 v12, v11, s42")
        a("v_lshrrev_b32 v12, 16, v12")
        a("v_mul_u32_u24 v13, 14, v12")
        a("v_sub_u32 v13, v11, v13")
        a("v_mul_lo_u32 v12, v12, s29")
        a("v_lshl_add_u32 v12, v13, 4, v12")
        a(f"v_add_u32 v{18+n}, s27, v12")
    a("v_cmp_gt_u32 vcc, 32, v0")
    a("v_mov_b32 v11, 0x7f000000")
    a("s_nop 0")
    a("v_cndmask_b32 v21, v11, v21, vcc")
    waits = [30, 18, 7, 0]
    def reads(hd):
        st = hd % 2
        for nt in range(7):
            for t in range(2):
                a(f"ds_read_b64_tr_b16 {vr(WF+28*st+4*nt+2*t,2)}, v{14 + hd//8} offset:{(hd%8)*6272 + t*1792 + nt*32}")
    def mf(hd):
        st = hd % 2
        for nt in range(7):
            a(f"{MFMA16} {vr(ACC+4*nt,4)}, {vr(WF+28*st+4*nt,4)}, {vr(OF+4*hd,4)}, {vr(ACC+4*nt,4)}")
    for s_, hs in enumerate(stages):
        a(f"s_waitcnt vmcnt({waits[s_]})")
        a("s_barrier")
        reads(hs[0])
        for hd in hs:
            if hd + 1 in hs:
                a("s_waitcnt lgkmcnt(0)")
                reads(hd + 1)
            else:
                a("s_waitcnt lgkmcnt(0)")
            mf(hd)
    a("s_nop 7")
    for nt in range(7):
        a(f"v_cvt_pk_bf16_f32 v{WF+2*nt}, v{ACC+4*nt}, v{ACC+4*nt+1}")
        a(f"v_cvt_pk_bf16_f32 v{WF+2*nt+1}, v{ACC+4*nt+2}, v{ACC+4*nt+3}")
        a(f"ds_write_b64 v16, {vr(WF+2*nt,2)} offset:{nt*32}")
    a("s_waitcnt lgkmcnt(0)")
    for n in range(4):
        a(f"ds_read_b128 {vr(OF+4*n,4)}, v17 offset:{n*1024}")
    for n in range(4):
        a(f"s_waitcnt lgkmcnt({3-n})")
        a(f"buffer_store_dwordx4 {vr(OF+4*n,4)}, v{18+n}, s[{SOUT}:{SOUT+3}], 0 offen")
    a.label("L_k3_end")
    a("s_endpgm")
    return a.text() + descriptor(name, 184, 184), (name, 256, 256, EP + 4 * 3584 + 1024)

HEAD = """; Kernarg layout (72 bytes): A_x@0 A_wqkv@8 A_wo@16 B_x@24 B_wqkv@32 B_wo@40 d_out@48 d_debug@56 d_ws@64
"""
def build(path, **kw):
    parts = [k1(kw.get("st1", "")), k2(kw.get("st2", "")), k3()]
    s = HEAD
    for _, (n, g, b, l) in parts:
        s += f"; @launch kernel={n} grid=({g},1,1) block=({b},1,1) lds={l}\n"
    s += '.amdgcn_target "amdgcn-amd-amdhsa--gfx950"\n'
    for t, _ in parts:
        s += t
    open(path, "w").write(s)

if __name__ == "__main__":
    out = sys.argv[1] if len(sys.argv) > 1 else f"cdna_kernels/{NAME}.s"
    build(out)
```

```python
import gen, sys
def noop():
    a = gen.Asm()
    gen.header(a, "noop_kernel")
    a("s_endpgm")
    return a.text() + gen.descriptor("noop_kernel", 8, 8, 16), ("noop_kernel", 256, 256, 0)
def build(path, order, **kw):
    parts = {"1": gen.k1(kw.get("st1", "")), "2": gen.k2(kw.get("st2", "")), "3": gen.k3(), "n": noop()}
    s = gen.HEAD
    for o in order:
        n, g, b, l = parts[o][1]
        s += f"; @launch kernel={n} grid=({g},1,1) block=({b},1,1) lds={l}\n"
    s += '.amdgcn_target "amdgcn-amd-amdhsa--gfx950"\n'
    for o in dict.fromkeys(order):
        s += parts[o][0]
    open(path, "w").write(s)
if __name__ == "__main__":
    for order in sys.argv[1:]:
        build(f"v_{order}.s", order)
```

```python
import struct, sys, math

NAME = "concat_heads__sliding_local_dilated__softmax_full_mha__prompt"

def f32(x):
    return "0x%08x" % struct.unpack("<I", struct.pack("<f", x))[0]

WS_T = lambda b, kind: (b * 3 + kind) * 0x200000
WS_O = lambda b: 0xC00000 + b * 0x200000
WS_FLAG = 0x1000000
WS_SIZE = 0x1010000
QSCALE = (28.0 ** -0.5) * math.log2(math.e)
COFF = 100.0
OOB = 0x7f000000

class Asm:
    def __init__(self):
        self.lines = []
    def __call__(self, s=""):
        for l in s.split("\n"):
            self.lines.append("    " + l.strip() if l.strip() and not l.strip().endswith(":") else l.strip())
    def label(self, l):
        self.lines.append(l + ":")
    def text(self):
        return "\n".join(self.lines) + "\n"

def vr(b, n=1):
    return f"v{b}" if n == 1 else f"v[{b}:{b+n-1}]"

def srd(a, s, ptr, size):
    a(f"s_mov_b32 s{s}, s{ptr}")
    a(f"s_and_b32 s{s+1}, s{ptr+1}, 0xffff")
    a(f"s_mov_b32 s{s+2}, {size}")
    a(f"s_mov_b32 s{s+3}, 0x20000")

def header(a, name):
    a.lines.append(".text")
    a.lines.append(f".globl {name}")
    a.lines.append(".p2align 8")
    a.lines.append(f".type {name},@function")
    a.label(name)

def descriptor(name, vgpr, accum, sgpr=96):
    return f""".section .rodata,"a"
.p2align 6
.amdhsa_kernel {name}
  .amdhsa_next_free_vgpr {vgpr}
  .amdhsa_next_free_sgpr {sgpr}
  .amdhsa_accum_offset {accum}
  .amdhsa_group_segment_fixed_size 0
  .amdhsa_kernarg_size 72
  .amdhsa_user_sgpr_count 2
  .amdhsa_user_sgpr_kernarg_segment_ptr 1
  .amdhsa_system_sgpr_workgroup_id_x 1
.end_amdhsa_kernel
"""

PROF = False
FINE = False
PRE1 = 2
NPER1 = 1
ROT2 = True
SLEEP2 = 2
LDFL = "sc1"
ST = "sc0 sc1"
ORDER2 = 0
PIPEB = 0
AT2 = 5
HPRIO = 0
HSET = 0

def stamp(a, j):
    if not PROF: return
    a(f"s_memrealtime s[{64+4*j}:{65+4*j}]")
    a(f"s_memtime s[{66+4*j}:{67+4*j}]")
def stamp_flush(a, n, swave, tmp=4):
    if not PROF: return
    a("s_load_dwordx2 s[60:61], s[0:1], 56")
    a("s_waitcnt lgkmcnt(0)")
    a(f"s_cmp_lg_u32 s{swave}, 0")
    lab = f"L_st_{len(a.lines)}"
    a(f"s_cbranch_scc1 {lab}")
    a("s_lshl_b32 s62, s2, 7")
    a(f"v_mov_b32 v{tmp}, s62")
    a("s_mov_b64 exec, 1")
    for j in range(n):
        for q in range(4):
            a(f"v_mov_b32 v{tmp+2+q}, s{64+4*j+q}")
        a(f"global_store_dwordx4 v{tmp}, v[{tmp+2}:{tmp+5}], s[60:61] offset:{16*j}")
        a("s_nop 1")
    a.label(lab)

MFMA32 = "v_mfma_f32_32x32x16_bf16"
MFMA16 = "v_mfma_f32_16x16x32_bf16"

def k1():
    a = Asm()
    name = "qkv_kernel"
    header(a, name)
    BUF = 37888
    S_B, S_RB, S_CG, S_W = 3, 4, 5, 6
    SX, SW_, SWS = 8, 12, 16
    S_XM0, S_WM0 = 20, 21
    S_STEP = 45
    S_XOFF, S_WOFF = 27, 28
    S_ST = 29
    a("s_cmp_ge_u32 s2, 256")
    a("s_cbranch_scc1 L_k1_end")
    stamp(a, 0)
    a("s_load_dwordx4 s[32:35], s[0:1], 0")
    a("s_load_dwordx4 s[36:39], s[0:1], 24")
    a("s_load_dwordx2 s[16:17], s[0:1], 64")
    a("v_lshrrev_b32 v1, 6, v0")
    a("v_and_b32 v0, 63, v0")
    a(f"v_readfirstlane_b32 s{S_W}, v1")
    a("s_lshr_b32 s23, s2, 3")
    a(f"s_bfe_u32 s{S_B}, s2, 0x10002")
    a("s_bfe_u32 s25, s2, 0x10001")
    a("s_lshl_b32 s25, s25, 3")
    a("s_and_b32 s26, s23, 7")
    a(f"s_add_u32 s{S_RB}, s25, s26")
    a("s_and_b32 s25, s2, 1")
    a("s_lshl_b32 s25, s25, 2")
    a("s_lshr_b32 s26, s23, 3")
    a(f"s_add_u32 s{S_CG}, s25, s26")
    a(f"s_cmp_ge_u32 s{S_W}, 4")
    a("s_cbranch_scc1 L_k1_compute")
    a(f"s_lshl_b32 s24, s{S_W}, 5")
    a(f"s_lshr_b32 s25, s{S_W}, 1")
    a("s_lshl_b32 s25, s25, 6")
    a(f"s_and_b32 s26, s{S_W}, 1")
    a("s_add_u32 s25, s25, s26")
    a(f"s_cmp_eq_u32 s{S_B}, 0")
    a("s_cselect_b32 s24, s25, s24")
    a(f"s_sub_u32 s25, 1, s{S_B}")
    a(f"s_lshl_b32 s{S_STEP}, 896, s25")
    a(f"s_lshl_b32 s25, s{S_RB}, 7")
    a("s_add_u32 s24, s24, s25")
    a("s_mul_i32 s24, s24, 896")
    a("v_lshrrev_b32 v8, 3, v0")
    a(f"v_mul_lo_u32 v9, v8, s{S_STEP}")
    a("v_add_u32 v9, s24, v9")
    a("v_and_b32 v6, 7, v0")
    a("v_lshrrev_b32 v7, 4, v0")
    a("v_xor_b32 v8, v6, v7")
    a("v_lshl_add_u32 v2, v8, 4, v9")
    a("v_xor_b32 v8, 4, v8")
    a("v_lshl_add_u32 v3, v8, 4, v9")
    a(f"s_lshl_b32 s25, s{S_STEP}, 3")
    a("v_add_u32 v3, s25, v3")
    a(f"s_lshl_b32 s25, s{S_STEP}, 4")
    a("v_add_u32 v4, s25, v2")
    a("v_add_u32 v5, s25, v3")
    a(f"s_lshl_b32 s{S_XM0}, s{S_W}, 12")
    a(f"s_mul_i32 s{S_WM0}, s{S_W}, 5376")
    a(f"s_mul_i32 s25, s{S_CG}, 336")
    a(f"s_mul_i32 s26, s{S_W}, {16*2688}")
    a("s_add_u32 s25, s25, s26")
    a("s_movk_i32 s42, 3121")
    a("s_movk_i32 s43, 2688")
    a("s_waitcnt lgkmcnt(0)")
    a(f"s_cmp_eq_u32 s{S_B}, 0")
    a("s_cselect_b32 s8, s32, s36")
    a("s_cselect_b32 s9, s33, s37")
    a("s_cselect_b32 s12, s34, s38")
    a("s_cselect_b32 s13, s35, s39")
    a("s_and_b32 s9, s9, 0xffff")
    a(f"s_mov_b32 s10, {2048*896}")
    a("s_mov_b32 s11, 0x20000")
    def dmaX(c):
        buf = (c % 4) * BUF
        so = "0" if c == 0 else f"s{S_XOFF}"
        if c: a(f"s_movk_i32 s{S_XOFF}, {c*128}")
        for e in range(4):
            a(f"s_add_u32 m0, s{S_XM0}, {buf + e*1024}")
            a("s_nop 0")
            a(f"buffer_load_dwordx4 v{2+e}, s[{SX}:{SX+3}], {so} offen lds")
    def dmaW1(c, n):
        buf = (c % 4) * BUF
        so = "0" if c == 0 else f"s{S_WOFF}"
        a(f"s_add_u32 m0, s{S_WM0}, {buf + 16384 + n*1024}")
        if n == 5: a("s_mov_b64 exec, 0xffff")
        else: a("s_nop 0")
        a(f"buffer_load_dwordx4 v{10+n}, s[{SW_}:{SW_+3}], {so} offen lds")
        if n == 5: a("s_mov_b64 exec, -1")
    def dmaW(c):
        if c: a(f"s_mov_b32 s{S_WOFF}, {c*64*2688}")
        for n in range(6): dmaW1(c, n)
    dmaX(0)
    a("s_and_b32 s13, s13, 0xffff")
    a(f"s_mov_b32 s14, {448*2688}")
    a("s_mov_b32 s15, 0x20000")
    for n in range(6):
        if n: a(f"v_add_u32 v16, {64*n}, v0")
        u = "v16" if n else "v0"
        a(f"v_mul_u32_u24 v17, s42, {u}")
        a("v_lshrrev_b32 v17, 16, v17")
        a("v_mul_u32_u24 v18, 21, v17")
        a(f"v_sub_u32 v18, {u}, v18")
        a("v_and_b32 v21, 3, v17")
        a("v_lshrrev_b32 v17, 2, v17")
        a("v_lshl_add_u32 v21, v21, 2, v17")
        a("v_mul_u32_u24 v21, s43, v21")
        a("v_lshl_add_u32 v21, v18, 4, v21")
        a(f"v_add_u32 v{10+n}, s25, v21")
        dmaW1(0, n)
    for c in range(1, PRE1):
        dmaX(c); dmaW(c)
    issued = PRE1
    for c in range(7):
        a(f"s_waitcnt vmcnt({10*(issued - 1 - c)})")
        a("s_barrier")
        n = 0
        while issued <= min(6, c + 3) and n < NPER1:
            dmaX(issued); dmaW(issued); issued += 1; n += 1
    a("s_endpgm")
    a.label("L_k1_compute")
    a(f"s_sub_u32 s{S_W}, s{S_W}, 4")
    a(f"s_and_b32 s22, s{S_W}, 3")
    a(f"s_lshr_b32 s23, s{S_W}, 2")
    a("v_and_b32 v4, 31, v0")
    a("v_lshrrev_b32 v5, 5, v0")
    a("v_bfe_u32 v6, v0, 1, 3")
    a("s_lshl_b32 s24, s22, 12")
    a("v_lshlrev_b32 v7, 7, v4")
    a("v_add_u32 v7, s24, v7")
    for ks in range(4):
        a(f"v_or_b32 v8, {2*ks}, v5")
        a("v_xor_b32 v8, v8, v6")
        a(f"v_lshl_add_u32 v{16+ks}, v8, 4, v7")
        a(f"v_add_u32 v{20+ks}, {2*BUF}, v{16+ks}")
    a("v_bfe_u32 v6, v0, 2, 2")
    a("v_lshlrev_b32 v6, 2, v6")
    a("v_lshl_add_u32 v6, v5, 1, v6")
    a("v_mul_u32_u24 v6, 336, v6")
    a("v_bfe_u32 v7, v0, 4, 1")
    a("v_lshl_add_u32 v6, v7, 5, v6")
    a("v_and_b32 v7, 3, v0")
    a("v_lshl_add_u32 v6, v7, 3, v6")
    a("s_mul_i32 s24, s23, 168")
    a("s_add_u32 s24, s24, 16384")
    a("v_add_u32 v24, s24, v6")
    a(f"v_add_u32 v25, {2*BUF}, v24")
    a(f"s_lshl_b32 s46, s{S_CG}, 1")
    a("s_add_u32 s46, s46, s23")
    a("s_mul_i32 s47, s46, 3")
    a("s_lshl_b32 s24, s47, 17")
    a(f"s_lshl_b32 s25, s{S_RB}, 2")
    a("s_add_u32 s25, s25, s22")
    a("s_lshl_b32 s25, s25, 11")
    a("s_add_u32 s24, s24, s25")
    a(f"s_mul_i32 s25, s{S_B}, {3*0x200000}")
    a(f"s_add_u32 s{S_ST}, s24, s25")
    a(f"s_add_u32 s30, s{S_ST}, 0x20000")
    a(f"s_add_u32 s31, s{S_ST}, 0x40000")
    for s_ in range(3):
        a(f"s_add_u32 s24, s47, {s_}")
        a("s_cmp_lt_u32 s24, 16")
        a(f"s_cselect_b32 s{48+s_}, {f32(QSCALE)}, 1.0")
        a(f"s_cselect_b32 s{51+s_}, 0, 0x3f80")
    a("v_lshlrev_b32 v1, 4, v0")
    a(f"s_mov_b32 s18, {WS_SIZE}")
    a("s_mov_b32 s19, 0x20000")
    a("s_waitcnt lgkmcnt(0)")
    a("s_and_b32 s17, s17, 0xffff")
    a(f"s_cmp_lg_u32 s{S_W}, 0")
    a("s_cbranch_scc1 L_k1_nf")
    a("s_lshl_b32 s24, s2, 6")
    a(f"s_add_u32 s24, s24, {WS_FLAG}")
    a("v_lshlrev_b32 v4, 2, v0")
    a("v_mov_b32 v5, 0")
    a("s_mov_b64 exec, 0xffff")
    a(f"buffer_store_dword v5, v4, s[{SWS}:{SWS+3}], s24 offen")
    a("s_mov_b64 exec, -1")
    a.label("L_k1_nf")
    ACC, XF, WF = 32, 80, 88
    def reads(n):
        c, ks = divmod(n, 4)
        st = n % 2
        hi = (c % 4) // 2
        bo = (c % 2) * BUF
        a(f"ds_read_b128 {vr(XF+4*st,4)}, v{16+ks+4*hi} offset:{bo}")
        for seg in range(3):
            for t in range(2):
                a(f"ds_read_b64_tr_b16 {vr(WF+12*st+4*seg+2*t,2)}, v{24+hi} offset:{bo + ks*5376 + t*336 + seg*56}")
    def body(kinds, tag):
        a("s_barrier")
        stamp(a, 1)
        reads(0)
        for n in range(28):
            c, ks = divmod(n, 4)
            if n + 1 < 28:
                if (n + 1) % 4 == 0:
                    a("s_waitcnt lgkmcnt(0)")
                    a("s_barrier")
                    if c + 1 in (1, 4): stamp(a, {1: 2, 4: 3}[c + 1])
                    reads(n + 1)
                else:
                    reads(n + 1)
                    a("s_waitcnt lgkmcnt(7)")
            else:
                a("s_waitcnt lgkmcnt(0)")
            st = n % 2
            x = vr(XF+4*st, 4)
            for seg in range(3):
                w = vr(WF+12*st+4*seg, 4)
                d = vr(ACC+16*seg, 16)
                cc = "0" if n == 0 else d
                a(f"{MFMA32} {d}, {w}, {x}, {cc}" if kinds[seg] == 0 else f"{MFMA32} {d}, {x}, {w}, {cc}")
        stamp(a, 4)
        a("s_nop 7"); a("s_nop 1")
        for seg in range(3):
            F = 80 + 8*seg
            A_ = ACC + 16*seg
            if kinds[seg] == 0:
                for i in range(8):
                    a(f"v_pk_mul_f32 {vr(A_+2*i,2)}, {vr(A_+2*i,2)}, s[{54+2*seg}:{55+2*seg}]")
            for i in range(8):
                a(f"v_cvt_pk_bf16_f32 v{F+i}, v{A_+2*i}, v{A_+2*i+1}")
            if kinds[seg] == 0:
                a("s_mov_b32 exec_lo, 0")
                a(f"v_mov_b32 v{F+6}, s{51+seg}")
                a(f"v_mov_b32 v{F+7}, 0")
                a("s_mov_b32 exec_lo, -1")
            else:
                a("s_mov_b32 exec_lo, 0xf0000000")
                a("s_mov_b32 exec_hi, 0xf0000000")
                for i in range(8):
                    a(f"v_mov_b32 v{F+i}, v26")
                a("s_mov_b64 exec, -1")
            so = [S_ST, 30, 31][seg]
            a(f"buffer_store_dwordx4 {vr(F,4)}, v1, s[{SWS}:{SWS+3}], s{so} offen {ST}")
            a(f"buffer_store_dwordx4 {vr(F+4,4)}, v1, s[{SWS}:{SWS+3}], s{so} offen offset:1024 {ST}")
        stamp(a, 5)
        if PROF:
            a("s_waitcnt vmcnt(0)")
            stamp(a, 6)
            stamp_flush(a, 7, S_W)
        a("s_endpgm")
    for s_ in range(3):
        a(f"s_mov_b32 s{54+2*s_}, s{48+s_}")
        a(f"s_mov_b32 s{55+2*s_}, s{48+s_}")
    a("v_mov_b32 v26, 0")
    a("s_mov_b32 exec_lo, 0x10000000")
    a("s_mov_b32 exec_hi, 0x10000000")
    a("v_mov_b32 v26, 0x3f803f80")
    a("s_mov_b64 exec, -1")
    a("s_cmp_gt_u32 s46, 10")
    a("s_cbranch_scc1 L_k1_v")
    a("s_cmp_eq_u32 s46, 10")
    a("s_cbranch_scc1 L_k1_m")
    body([0, 0, 0], "q")
    a.label("L_k1_m")
    body([0, 0, 1], "m")
    a.label("L_k1_v")
    body([1, 1, 1], "v")
    a.label("L_k1_end")
    a("s_endpgm")
    return a.text() + descriptor(name, 112, 112), (name, 256, 768, 4 * BUF + 64)

def k2():
    a = Asm()
    name = "attn_kernel"
    header(a, name)
    SWS = 8
    S_W, S_HEAD, S_QB = 3, 4, 5
    S_IT = 14
    WOSZ = 448 * 128
    RED = 2 * WOSZ
    LDS_TOTAL = RED + 49152
    W = f"s[{SWS}:{SWS+3}]"
    VL, VID, T0, T1, T2, T3, VFO, VONE = 240, 241, 242, 243, 244, 245, 246, 247
    a("s_cmp_ge_u32 s2, 256")
    a("s_cbranch_scc1 L_k2_end")
    stamp(a, 0)
    a("s_load_dwordx2 s[8:9], s[0:1], 64")
    a(f"v_lshrrev_b32 v{T0}, 6, v0")
    a(f"v_and_b32 v{VID}, 63, v0")
    a(f"v_readfirstlane_b32 s{S_W}, v{T0}")
    a(f"v_lshlrev_b32 v{VL}, 4, v{VID}")
    a("s_and_b32 s34, s2, 7")
    a("s_lshl_b32 s34, s34, 1")
    a("s_bfe_u32 s35, s2, 0x10007")
    a(f"s_add_u32 s{S_HEAD}, s34, s35")
    a(f"s_bfe_u32 s{S_QB}, s2, 0x40003")
    a(f"s_lshl_b32 s33, s{S_HEAD}, 17")
    a(f"s_mov_b32 s10, {WS_SIZE}")
    a("s_mov_b32 s11, 0x20000")
    a(f"s_and_b32 s6, s{S_W}, 3")
    a(f"s_lshl_b32 s34, s{S_QB}, 2")
    a("s_add_u32 s34, s34, s6")
    a("s_lshl_b32 s23, s34, 11")
    a("s_add_u32 s23, s23, s33")
    a(f"s_cmp_ge_u32 s{S_W}, 4")
    a("s_cbranch_scc1 L_k2_H")
    def ldi(dst, soff, imm, fl=""):
        o = f" offset:{imm}" if imm else ""
        return f"buffer_load_dwordx4 {dst}, v{VL}, {W}, s{soff} offen{o} {fl}"
    def ld(dst, soff, imm): a(ldi(dst, soff, imm))
    def rowmax(dst, tmp, regs):
        a(f"v_max3_f32 v{dst}, v{regs[0]}, v{regs[1]}, v{regs[2]}")
        i = 3
        while i + 1 < len(regs):
            a(f"v_max3_f32 v{dst}, v{dst}, v{regs[i]}, v{regs[i+1]}"); i += 2
        if i < len(regs):
            a(f"v_max_f32 v{dst}, v{dst}, v{regs[i]}")
        a(f"v_mov_b32 v{tmp}, v{dst}")
        a("s_nop 1")
        a(f"v_permlane32_swap_b32 v{dst}, v{tmp}")
        a("s_nop 1")
        a(f"v_max_f32 v{dst}, v{dst}, v{tmp}")
    S_KB, S_VB, S_KO, S_VO = 16, 17, 19, 20
    S_OB, S_FB, S_OA, S_FA = 32, 31, 21, 22
    Q, O, S, P, KV = 0, 32, 96, 128, 144
    FQ, FK, FKP, FV, FVP = 208, 216, 224, 232, 248
    SMASK = 60
    ATILE = AT2
    vq = []
    def vm(instr, tag):
        vq.append(tag); return instr
    def need(*tags):
        last = max(i for i, t in enumerate(vq) if t in tags)
        return len(vq) - 1 - last
    a(f"s_lshl_b32 s37, s{S_W}, 15")
    a("s_add_u32 s37, s37, s33")
    a(f"s_add_u32 s{S_KB}, s37, {WS_T(1,1)}")
    a(f"s_add_u32 s{S_VB}, s37, {WS_T(1,2)}")
    a(f"s_add_u32 s52, s23, {WS_T(1,0)}")
    a("s_waitcnt lgkmcnt(0)")
    if FINE == 2: stamp(a, 2)
    a("s_and_b32 s9, s9, 0xffff")
    def Kreg(b, m): return vr(KV + 16*b + 4*m, 4)
    def Vreg(b, m): return vr(KV + 16*b + 8 + 4*m, 4)
    def Kld(t, m, so, imm): return vm(ldi(Kreg(t % 4, m), so, imm + 1024*m), f"K{t}")
    def Vld(t, m, so, imm): return vm(ldi(Vreg(t % 4, m), so, imm + 1024*m), f"V{t}")
    def Qld(q, m): return vm(ldi(vr(Q+8*q+4*m,4), 52+q, 1024*m), f"Q{q}")
    a(Qld(0,0)); a(Kld(0,0,S_KB,0)); a(Qld(0,1)); a(Kld(0,1,S_KB,0))
    a("s_sub_u32 s36, s23, 4096")
    a("s_cmp_lt_u32 s34, 2")
    a("s_cselect_b32 s36, s23, s36")
    a("s_cselect_b32 s30, 0, -1")
    a(f"s_add_u32 s24, s23, {WS_T(0,1)}")
    a(f"s_add_u32 s25, s36, {WS_T(0,1)}")
    a(f"s_add_u32 s26, s23, {WS_T(0,2)}")
    a(f"s_add_u32 s27, s36, {WS_T(0,2)}")
    a("s_lshl_b32 s36, s34, 15")
    a(f"s_lshl_b32 s37, s{S_HEAD}, 11")
    a("s_add_u32 s36, s36, s37")
    a(f"s_add_u32 s{S_OB}, s36, {WS_O(1)}")
    a(f"s_add_u32 s{S_OA}, s36, {WS_O(0)}")
    a("s_lshl_b32 s36, s34, 7")
    a(f"s_lshl_b32 s37, s{S_HEAD}, 2")
    a("s_add_u32 s36, s36, s37")
    a(f"s_add_u32 s{S_FB}, s36, {WS_FLAG + 8192}")
    a(f"s_add_u32 s{S_FA}, s36, {WS_FLAG}")
    def lanemask(fn):
        m = 0
        for l in range(64):
            if fn(l & 31, l >> 5): m |= 1 << l
        return m
    regs = list(range(16)) + [28, 29, 30, 31]
    def mask_instrs(j, sp):
        r = regs[j]
        if r < 16:
            m = lanemask(lambda i, h: 0 <= i - (8*(r//4) + 4*h + r%4) <= 7)
            return [f"s_mov_b32 s{sp}, 0x{m & 0xffffffff:x}", f"s_mov_b32 s{sp+1}, 0x{m >> 32:x}"]
        m = lanemask(lambda i, h: (24 + 4*h + r - 28) >= i + 25)
        return [f"s_and_b32 s{sp}, s30, 0x{m & 0xffffffff:x}", f"s_and_b32 s{sp+1}, s30, 0x{m >> 32:x}"]
    if not PROF:
        for j in range(20):
            for x in mask_instrs(j, SMASK + 2*j): a(x)
    a(f"s_lshl_b32 s35, s{S_QB}, 13")
    a("s_add_u32 s35, s35, s33")
    a(f"s_add_u32 s35, s35, {WS_T(1,0)}")
    for q in range(4):
        a(f"s_add_u32 s36, s{S_W}, {q}")
        a("s_and_b32 s36, s36, 3")
        a(f"s_lshl_b32 s{56+q}, s36, 7")
        if q:
            a("s_lshl_b32 s36, s36, 11")
            a(f"s_add_u32 s{52+q}, s36, s35")
            a(Qld(q,0)); a(Qld(q,1))
    a(f"s_add_u32 s{S_KO}, s{S_KB}, 4096")
    a(f"s_add_u32 s{S_VO}, s{S_VB}, 4096")
    for m in range(2): a(Vld(0,m,S_VB,0))
    for m in range(2): a(Kld(1,m,S_KB,2048))
    for m in range(2): a(Vld(1,m,S_VB,2048))
    for m in range(2): a(Kld(2,m,S_KO,0))
    for m in range(2): a(Vld(2,m,S_VO,0))
    for m in range(2): a(Kld(3,m,S_KO,2048))
    a(f"v_mov_b32 v{VONE}, 1")
    a(f"v_mov_b32 v{VFO}, {OOB}")
    a(f"v_writelane_b32 v{VFO}, 0, 0")
    a(f"v_and_b32 v{T2}, 31, v{VID}")
    a(f"v_lshlrev_b32 v{T2}, 2, v{T2}")
    a(f"v_add_u32 v{T2}, {RED}, v{T2}")
    for q in range(4):
        a(f"v_add_u32 v{S+16+q}, s{56+q}, v{T2}")
    a(f"v_mov_b32 v{T3}, 0")
    if FINE == 2: stamp(a, 4)
    a(f"s_waitcnt vmcnt({need('Q0', 'K0')})")
    stamp(a, 1)
    a(f"{MFMA32} {vr(S,16)}, {Kreg(0,0)}, {vr(Q,4)}, 0")
    a(f"{MFMA32} {vr(S,16)}, {Kreg(0,1)}, {vr(Q+4,4)}, {vr(S,16)}")
    a("s_nop 7"); a("s_nop 3")
    rowmax(T0, T1, [S + i for i in range(16)])
    a(f"v_sub_f32 v{T0}, {f32(-COFF)}, v{T0}")
    a(f"ds_write_b32 v{S+16}, v{T0}")
    a("s_mov_b32 exec_lo, 0")
    a(f"v_cvt_pk_bf16_f32 v{Q+6}, v{T0}, v{T3}")
    a("s_mov_b32 exec_lo, -1")
    a("s_waitcnt lgkmcnt(0)")
    a("s_barrier")
    if FINE == 2: stamp(a, 5)
    for q in range(1, 4):
        a(f"ds_read_b32 v{S+20+q}, v{S+16+q}")
    a(f"{MFMA32} {vr(S,16)}, {Kreg(0,0)}, {vr(Q,4)}, 0")
    a(f"{MFMA32} {vr(S,16)}, {Kreg(0,1)}, {vr(Q+4,4)}, {vr(S,16)}")
    a("s_mov_b32 exec_lo, 0")
    for q in range(1, 4):
        a(f"s_waitcnt vmcnt({need(f'Q{q}')}) lgkmcnt({3-q})")
        a(f"v_cvt_pk_bf16_f32 v{Q+8*q+6}, v{S+20+q}, v{T3}")
    a("s_mov_b32 exec_lo, -1")
    a("s_nop 2")
    if FINE != 1: stamp(a, 6)
    afr = [(FQ, 23, 0), (FQ+4, 23, 1024), (FK, 24, 0), (FK+4, 24, 1024), (FKP, 25, 0), (FKP+4, 25, 1024),
           (FV, 26, 0), (FV+4, 26, 1024), (FVP, 27, 1024)]
    def a_unit():
        PA, OA = P, 208
        a("s_nop 0")
        a(f"{MFMA32} {vr(O+48,16)}, {Vreg(ATILE%4,0)}, {vr(P+8,4)}, {vr(O+48,16)}")
        a(f"{MFMA32} {vr(O+48,16)}, {Vreg(ATILE%4,1)}, {vr(P+12,4)}, {vr(O+48,16)}")
        a(f"s_waitcnt vmcnt({need('A')})")
        a(f"{MFMA32} {vr(S,16)}, {vr(FK,4)}, {vr(FQ,4)}, 0")
        a(f"{MFMA32} {vr(S,16)}, {vr(FK+4,4)}, {vr(FQ+4,4)}, {vr(S,16)}")
        a(f"{MFMA32} {vr(S+16,16)}, {vr(FKP,4)}, {vr(FQ,4)}, 0")
        a(f"{MFMA32} {vr(S+16,16)}, {vr(FKP+4,4)}, {vr(FQ+4,4)}, {vr(S+16,16)}")
        a(f"v_mov_b32 v{T3}, {f32(-1e30)}")
        a(f"v_mov_b32 v{PA+8}, 0")
        a(f"v_mov_b32 v{PA+9}, 0")
        a("s_nop 6")
        for j, r in enumerate(regs):
            sp = SMASK + 2*j
            if PROF:
                sp = 36
                for x in mask_instrs(j, sp): a(x)
            a(f"v_cndmask_b32 v{S+r}, v{T3}, v{S+r}, s[{sp}:{sp+1}]")
        rowmax(T0, T1, [S + r for r in regs])
        for r in regs:
            a(f"v_sub_f32 v{S+r}, v{S+r}, v{T0}")
        for r in regs:
            a(f"v_exp_f32 v{S+r}, v{S+r}")
        for i in range(8):
            a(f"v_cvt_pk_bf16_f32 v{PA+i}, v{S+2*i}, v{S+2*i+1}")
        a(f"v_cvt_pk_bf16_f32 v{PA+10}, v{S+28}, v{S+29}")
        a(f"v_cvt_pk_bf16_f32 v{PA+11}, v{S+30}, v{S+31}")
        a("s_nop 0")
        a(f"{MFMA32} {vr(OA,16)}, {vr(FV,4)}, {vr(PA,4)}, 0")
        a(f"{MFMA32} {vr(OA,16)}, {vr(FV+4,4)}, {vr(PA+4,4)}, {vr(OA,16)}")
        a(f"{MFMA32} {vr(OA,16)}, {vr(FVP,4)}, {vr(PA+8,4)}, {vr(OA,16)}")
        nb = (ATILE + 1) % 4
        a(f"{MFMA32} {vr(S,16)}, {Kreg(nb,0)}, {vr(Q,4)}, 0")
        a(f"{MFMA32} {vr(S,16)}, {Kreg(nb,1)}, {vr(Q+4,4)}, {vr(S,16)}")
        a("s_nop 7"); a("s_nop 1")
        a(f"v_mov_b32 v{T0}, v{OA+12}")
        a(f"v_mov_b32 v{T1}, v{OA+12}")
        a("s_nop 1")
        a(f"v_permlane32_swap_b32 v{T0}, v{T1}")
        a("s_nop 1")
        a(f"v_rcp_f32 v{T1}, v{T1}")
        a("s_nop 0")
        for i in range(16):
            a(f"v_mul_f32 v{OA+i}, v{OA+i}, v{T1}")
        for i in range(8):
            a(f"v_cvt_pk_bf16_f32 v{FKP+i}, v{OA+2*i}, v{OA+2*i+1}")
        a("s_mov_b32 exec_lo, 0")
        a(f"v_mov_b32 v{FKP+6}, 0")
        a(f"v_mov_b32 v{FKP+7}, 0")
        a("s_mov_b32 exec_lo, -1")
        a(vm(f"buffer_store_dwordx4 {vr(FKP,4)}, v{VL}, {W}, s{S_OA} offen {ST}", "OA"))
        a(vm(f"buffer_store_dwordx4 {vr(FKP+4,4)}, v{VL}, {W}, s{S_OA} offen offset:1024 {ST}", "OA"))
    waited = {"n": None}
    flag_done = False
    for kt in range(16):
        for q in range(4):
            u = kt*4 + q
            sb = S + 16*(u % 2)
            sn = S + 16*((u+1) % 2)
            pb = P + 8*(u % 2)
            pp = P + 8*((u+1) % 2)
            nk, nq = divmod(u + 1, 4)
            pk_, pq = divmod(u - 1, 4)
            oc = "0" if pk_ == 0 else vr(O+16*pq,16)
            ms = [
                f"{MFMA32} {vr(sn,16)}, {Kreg(nk%4,0)}, {vr(Q+8*nq,4)}, 0",
                f"{MFMA32} {vr(sn,16)}, {Kreg(nk%4,1)}, {vr(Q+8*nq+4,4)}, {vr(sn,16)}",
                f"{MFMA32} {vr(O+16*pq,16)}, {Vreg(pk_%4,0)}, {vr(pp,4)}, {oc}",
                f"{MFMA32} {vr(O+16*pq,16)}, {Vreg(pk_%4,1)}, {vr(pp+4,4)}, {vr(O+16*pq,16)}",
            ]
            if u == 63 or u == ATILE*4 + 3: ms[0] = ms[1] = None
            if u == 0 or u == ATILE*4 + 4: ms[2] = ms[3] = None
            def slot(g):
                nonlocal flag_done
                if q == 0:
                    if g == 0 and kt + 3 < 16 and (kt + 3) % 2 == 0: return f"s_add_u32 s{S_VO}, s{S_VB}, {(kt+3)*2048}"
                    if g == 1 and kt + 4 < 16 and (kt + 4) % 2 == 0: return f"s_add_u32 s{S_KO}, s{S_KB}, {(kt+4)*2048}"
                    if g >= 2 and afr and kt >= 1:
                        d, so, imm = afr.pop(0); return vm(ldi(vr(d,4), so, imm), "A")
                if q == 1:
                    if g == 1: return f"s_waitcnt vmcnt({need(f'V{kt}')})"
                    if g >= 2 and kt + 3 < 16: return Vld(kt+3, g-2, S_VO, ((kt+3) % 2)*2048)
                if q == 2:
                    if g == 0 and kt == 12: return "s_barrier"
                    if g < 3 and afr and kt >= 1:
                        d, so, imm = afr.pop(0); return vm(ldi(vr(d,4), so, imm), "A")
                    if g == 3 and kt + 1 < 16:
                        n = need(f'K{kt+1}')
                        if "OA" in vq and not flag_done and need("OA") >= n: waited["n"] = True
                        return f"s_waitcnt vmcnt({n})"
                if q == 3:
                    if g < 2 and kt + 4 < 16: return Kld(kt+4, g, S_KO, ((kt+4) % 2)*2048)
                    if g == 2 and waited["n"] and not flag_done:
                        flag_done = True
                        return vm(f"buffer_store_dword v{VONE}, v{VFO}, {W}, s{S_FA} offen sc0 sc1", "FA")
                return None
            for g in range(4):
                if ms[g]: a(ms[g])
                x = slot(g)
                if x: a(x)
                for e in range(4):
                    a(f"v_exp_f32 v{sb+4*g+e}, v{sb+4*g+e}")
                a(f"v_cvt_pk_bf16_f32 v{pb+2*g}, v{sb+4*g}, v{sb+4*g+1}")
                a(f"v_cvt_pk_bf16_f32 v{pb+2*g+1}, v{sb+4*g+2}, v{sb+4*g+3}")
        if kt == ATILE:
            assert not afr
            a_unit()
        if FINE == 1 and kt in (3, 7, 11): stamp(a, {3: 3, 7: 4, 11: 5}[kt])
    assert flag_done
    if FINE != 2: stamp(a, 2)
    a("s_nop 0")
    a(f"{MFMA32} {vr(O+48,16)}, {Vreg(3,0)}, {vr(P+8,4)}, {vr(O+48,16)}")
    a(f"{MFMA32} {vr(O+48,16)}, {Vreg(3,1)}, {vr(P+12,4)}, {vr(O+48,16)}")
    for q in range(1, 4):
        a(f"s_mul_i32 s34, s{56+q}, 96")
        a(f"s_add_u32 s34, s34, {RED}")
        a(f"v_add_u32 v{S+q}, s34, v{VL}")
    for q in range(1, 4):
        if q == 3: a("s_nop 0")
        for rq in range(4):
            a(f"ds_write_b128 v{S+q}, {vr(O+16*q+4*rq,4)} offset:{(q-1)*4096 + rq*1024}")
    a(f"s_mul_i32 s34, s{S_W}, 12288")
    a(f"s_add_u32 s34, s34, {RED}")
    a(f"v_add_u32 v{S}, s34, v{VL}")
    a(f"s_mov_b32 s34, {f32(2.0**-(COFF+10))}")
    a("s_waitcnt lgkmcnt(0)")
    a("s_barrier")
    if not FINE: stamp(a, 3)
    for j in range(12):
        a(f"ds_read_b128 {vr(O+16+4*j,4)}, v{S} offset:{j*1024}")
    for s_ in range(3):
        a(f"s_waitcnt lgkmcnt({8-4*s_})")
        for i in range(8):
            a(f"v_pk_add_f32 {vr(O+2*i,2)}, {vr(O+2*i,2)}, {vr(O+16+16*s_+2*i,2)}")
    a(f"v_mov_b32 v{T0}, v{O+12}")
    a(f"v_mov_b32 v{T1}, v{O+12}")
    a(f"v_pk_mul_f32 {vr(T2,2)}, {vr(O,2)}, 0 op_sel_hi:[1,0]")
    a(f"v_pk_fma_f32 {vr(T2,2)}, {vr(O+2,2)}, 0, {vr(T2,2)} op_sel_hi:[1,0,1]")
    a(f"v_permlane32_swap_b32 v{T0}, v{T1}")
    for i in range(2, 8):
        a(f"v_pk_fma_f32 {vr(T2,2)}, {vr(O+2*i,2)}, 0, {vr(T2,2)} op_sel_hi:[1,0,1]")
    a(f"v_cmp_nge_f32 s[36:37], v{T1}, s34")
    a(f"v_cmp_u_f32 vcc, v{T2}, v{T3}")
    a("s_nop 0")
    a("s_or_b64 vcc, vcc, s[36:37]")
    a("s_cbranch_vccnz L_k2_slow")
    a.label("L_k2_fin")
    a(f"v_rcp_f32 v{T1}, v{T1}")
    a("s_nop 0")
    for i in range(16):
        a(f"v_mul_f32 v{O+i}, v{O+i}, v{T1}")
    for i in range(8):
        a(f"v_cvt_pk_bf16_f32 v{P+i}, v{O+2*i}, v{O+2*i+1}")
    a("s_mov_b32 exec_lo, 0")
    a(f"v_mov_b32 v{P+6}, 0")
    a(f"v_mov_b32 v{P+7}, 0")
    a("s_mov_b32 exec_lo, -1")
    a(f"buffer_store_dwordx4 {vr(P,4)}, v{VL}, {W}, s{S_OB} offen {ST}")
    a(f"buffer_store_dwordx4 {vr(P+4,4)}, v{VL}, {W}, s{S_OB} offen offset:1024 {ST}")
    if not FINE: stamp(a, 4)
    a("s_waitcnt vmcnt(0)")
    a(f"buffer_store_dword v{VONE}, v{VFO}, {W}, s{S_FB} offen sc0 sc1")
    if not FINE: stamp(a, 5)
    stamp_flush(a, 7, S_W)
    a("s_endpgm")
    a.label("L_k2_slow")
    M = T2
    a("s_waitcnt vmcnt(0)")
    a(f"s_add_u32 s41, s33, {WS_T(1,2)}")
    a(f"s_add_u32 s40, s33, {WS_T(1,1)}")
    a(f"v_mov_b32 v{M}, 0xff800000")
    a("s_mov_b32 exec_lo, 0")
    a(f"v_mov_b32 v{Q+6}, 0")
    a("s_mov_b32 exec_lo, -1")
    for i in range(16):
        a(f"v_mov_b32 v{O+i}, 0")
    a(f"s_mov_b32 s{S_IT}, 0")
    a.label("L_k2_slow_loop")
    ld(Kreg(0,0), 40, 0); ld(Kreg(0,1), 40, 1024)
    ld(Vreg(0,0), 41, 0); ld(Vreg(0,1), 41, 1024)
    a("s_waitcnt vmcnt(0)")
    a(f"{MFMA32} {vr(S,16)}, {Kreg(0,0)}, {vr(Q,4)}, 0")
    a(f"{MFMA32} {vr(S,16)}, {Kreg(0,1)}, {vr(Q+4,4)}, {vr(S,16)}")
    a("s_nop 7"); a("s_nop 4")
    rowmax(T0, T1, [M] + [S + i for i in range(16)])
    a(f"v_sub_f32 v{T1}, v{M}, v{T0}")
    a(f"v_exp_f32 v{T1}, v{T1}")
    a(f"v_mov_b32 v{M}, v{T0}")
    for i in range(16):
        a(f"v_mul_f32 v{O+i}, v{O+i}, v{T1}")
    for i in range(16):
        a(f"v_sub_f32 v{S+i}, v{S+i}, v{M}")
    for i in range(16):
        a(f"v_exp_f32 v{S+i}, v{S+i}")
    a("s_nop 0")
    for i in range(8):
        a(f"v_cvt_pk_bf16_f32 v{P+i}, v{S+2*i}, v{S+2*i+1}")
    a("s_nop 1")
    a(f"{MFMA32} {vr(O,16)}, {Vreg(0,0)}, {vr(P,4)}, {vr(O,16)}")
    a(f"{MFMA32} {vr(O,16)}, {Vreg(0,1)}, {vr(P+4,4)}, {vr(O,16)}")
    a("s_add_u32 s40, s40, 2048")
    a("s_add_u32 s41, s41, 2048")
    a(f"s_add_u32 s{S_IT}, s{S_IT}, 1")
    a("s_nop 7"); a("s_nop 4")
    a(f"s_cmp_lt_u32 s{S_IT}, 64")
    a("s_cbranch_scc1 L_k2_slow_loop")
    a(f"v_mov_b32 v{T0}, v{O+12}")
    a(f"v_mov_b32 v{T1}, v{O+12}")
    a("s_nop 1")
    a(f"v_permlane32_swap_b32 v{T0}, v{T1}")
    a("s_nop 1")
    a("s_branch L_k2_fin")
    a.label("L_k2_H")
    a(f"s_setprio {HPRIO}")
    SWO, SOUT = 12, 16
    S_AW = 6
    S_OLD, S_FL, S_M0 = 22, 24, 25
    OF, ACC, PKA = 0, 64, 80
    VT, VT15 = 88, 92
    VD, VO, VTW, VTRD, VGA, VGB, VFL = 96, 97, 98, 99, 100, 101, 102
    WF = 104
    a("s_load_dwordx2 s[44:45], s[0:1], 16")
    a("s_load_dwordx4 s[48:51], s[0:1], 40")
    def hsetup():
        a("s_and_b32 s27, s2, 7")
        a("s_lshl_b32 s27, s27, 2")
        a("s_bfe_u32 s34, s2, 0x20006")
        a("s_add_u32 s27, s27, s34")
        a("s_lshl_b32 s27, s27, 1")
        a(f"s_lshr_b32 s34, s{S_AW}, 1")
        a("s_add_u32 s27, s27, s34")
        a(f"s_and_b32 s29, s{S_AW}, 1")
        a("s_lshl_b32 s34, s27, 15")
        a(f"s_add_u32 s{S_OLD}, s34, {WS_O(0)}")
        a("s_lshl_b32 s34, s27, 7")
        a(f"s_add_u32 s{S_FL}, s34, {WS_FLAG}")
        a(f"s_lshl_b32 s{S_M0}, s{S_AW}, 10")
        a("s_lshl_b32 s30, s28, 7")
        a(f"v_lshrrev_b32 v{T0}, 3, v{VID}")
        a(f"v_and_b32 v{T1}, 7, v{VID}")
        a(f"v_lshrrev_b32 v{T2}, 4, v{VID}")
        a(f"v_lshlrev_b32 v{T3}, 1, v{T2}")
        a(f"v_xor_b32 v{T3}, v{T3}, v{T1}")
        a(f"v_mul_u32_u24 v{VD}, 896, v{T0}")
        a(f"v_lshl_add_u32 v{VD}, v{T3}, 4, v{VD}")
        a(f"s_mul_i32 s34, s{S_AW}, 7168")
        a("s_add_u32 s34, s34, s30")
        a(f"v_add_u32 v{VD}, s34, v{VD}")
        a(f"s_mul_i32 s34, s{S_AW}, 2304")
        a(f"s_add_u32 s34, s34, {RED + 1024}")
        a(f"v_and_b32 v{VO}, 15, v{VID}")
        a(f"v_mul_u32_u24 v{T3}, 144, v{VO}")
        a(f"v_lshl_add_u32 v{T3}, v{T2}, 3, v{T3}")
        a(f"v_add_u32 v{VTW}, s34, v{T3}")
        a(f"v_mul_u32_u24 v{T3}, 144, v{T0}")
        a(f"v_lshl_add_u32 v{T3}, v{T1}, 4, v{T3}")
        a(f"v_add_u32 v{VTRD}, s34, v{T3}")
        a("s_lshr_b32 s34, s27, 1")
        a("s_lshl_b32 s34, s34, 6")
        a("s_and_b32 s35, s27, 1")
        a("s_add_u32 s34, s34, s35")
        a("s_lshl_b32 s35, s29, 5")
        a("s_add_u32 s34, s34, s35")
        a("s_mul_i32 s34, s34, 1792")
        a("s_add_u32 s34, s34, s30")
        a(f"v_mul_u32_u24 v{T3}, 3584, v{T0}")
        a(f"v_lshl_add_u32 v{T3}, v{T1}, 4, v{T3}")
        a(f"v_add_u32 v{VGA}, s34, v{T3}")
        a("s_lshl_b32 s34, s27, 5")
        a("s_lshl_b32 s35, s29, 4")
        a("s_add_u32 s34, s34, s35")
        a("s_mul_i32 s34, s34, 1792")
        a("s_add_u32 s34, s34, s30")
        a("s_add_u32 s34, s34, 896")
        a(f"v_mul_u32_u24 v{T3}, 1792, v{T0}")
        a(f"v_lshl_add_u32 v{T3}, v{T1}, 4, v{T3}")
        a(f"v_add_u32 v{VGB}, s34, v{T3}")
        a(f"v_lshlrev_b32 v{VO}, 4, v{VO}")
        a(f"v_lshrrev_b32 v{T0}, 5, v{VID}")
        a(f"v_lshl_add_u32 v{VO}, v{T0}, 10, v{VO}")
        a(f"v_bfe_u32 v{T1}, v{VID}, 4, 1")
        a(f"v_lshl_add_u32 v{VO}, v{T1}, 9, v{VO}")
        a("s_lshl_b32 s34, s29, 8")
        a(f"v_add_u32 v{VO}, s34, v{VO}")
        a(f"v_lshlrev_b32 v{T0}, 4, v{T0}")
        a(f"v_lshl_add_u32 v{T0}, v{T1}, 2, v{T0}")
        a(f"v_bfe_u32 v{T1}, v{VID}, 2, 2")
        a(f"v_add_u32 v{T0}, v{T0}, v{T1}")
        a(f"v_bfe_u32 v{T1}, v{T0}, 1, 2")
        a(f"v_lshlrev_b32 v{T0}, 7, v{T0}")
        a(f"v_and_b32 v{T3}, 3, v{VID}")
        a(f"v_lshl_add_u32 v{T0}, v{T3}, 3, v{T0}")
        a(f"v_cmp_eq_u32 vcc, 3, v{T2}")
        a(f"v_mov_b32 v{T3}, 0")
        a(f"v_mov_b32 v{VFL}, 1024")
        a(f"v_cndmask_b32 v{T2}, v{T3}, v{VFL}, vcc")
        for e in range(4):
            a(f"v_xor_b32 v{T3}, {e}, v{T1}")
            a(f"v_lshl_add_u32 v{VT+e}, v{T3}, 5, v{T0}")
            a(f"v_sub_u32 v{VT15+e}, v{VT+e}, v{T2}")
        a(f"v_lshlrev_b32 v{VFL}, 2, v{VID}")
    a("s_bfe_u32 s28, s2, 0x30003")
    if HSET == 0: hsetup()
    a("s_waitcnt lgkmcnt(0)")
    a("s_and_b32 s9, s9, 0xffff")
    if PROF: stamp(a, 1)
    a("s_barrier")
    a("s_cmp_eq_u32 s28, 7")
    a("s_cbranch_scc1 L_k2_end")
    if HSET == 1: hsetup()
    srd(a, SWO, 44, 448 * 896)
    srd(a, SOUT, 50, 2048 * 1792)
    a("s_barrier")
    a("s_setprio 3")
    def poll(tag):
        a("s_mov_b64 exec, 0xffff")
        a("s_mov_b32 s35, 0")
        a.label(f"L_k2_poll{tag}")
        a(f"buffer_load_dword v{T3}, v{VFL}, {W}, s{S_FL} offen sc0 sc1")
        a("s_waitcnt vmcnt(0)")
        a(f"v_cmp_eq_u32 vcc, 1, v{T3}")
        a("s_add_u32 s35, s35, 1")
        a("s_cmp_eq_u64 vcc, exec")
        a(f"s_cbranch_scc1 L_k2_go{tag}")
        a(f"s_sleep {SLEEP2}")
        a("s_cmp_lt_u32 s35, 0x40000")
        a(f"s_cbranch_scc1 L_k2_poll{tag}")
        a.label(f"L_k2_go{tag}")
        a("s_mov_b64 exec, -1")
    def oloads():
        for hd in range(16):
            if hd % 2 == 0:
                a(f"s_add_u32 s34, s{S_OLD}, {(hd//2)*4096}")
            o = " offset:2048" if hd % 2 else ""
            a(f"buffer_load_dwordx4 {vr(OF+4*hd,4)}, v{VO}, {W}, s34 offen{o} {LDFL}")
    def wo_dma(b):
        for n in range(14):
            if n: a(f"s_mov_b32 s34, {n*4*7168}")
            a(f"s_add_u32 m0, s{S_M0}, {b*WOSZ + n*4096}")
            a("s_nop 0")
            a(f"buffer_load_dwordx4 v{VD}, s[{SWO}:{SWO+3}], {'s34' if n else '0'} offen lds")
    def reads(hd):
        st = hd % 8
        for nt in range(4):
            for t in range(2):
                base = VT15 if (hd == 15 and t == 1) else VT
                a(f"ds_read_b64_tr_b16 {vr(WF+16*st+4*nt+2*t,2)}, v{base + (nt ^ (2*(hd&1)))} offset:{hd*3584 + t*1024}")
    def preload():
        for hd in range(8):
            if hd: a("s_waitcnt lgkmcnt(4)")
            reads(hd)
    def oload(hd):
        a(f"s_add_u32 s34, s{S_OLD}, {hd*2048}")
        a(f"buffer_load_dwordx4 {vr(OF+4*hd,4)}, v{VO}, {W}, s34 offen {LDFL}")
    def gemm(late_loads, dst):
        for hd in range(16):
            if late_loads and hd < 8: oload(hd + 8)
            n = 10 if (late_loads and hd < 8) else 15 - hd
            lg = "" if hd < 8 else f" lgkmcnt({min(8*(15-hd), 7)})" if hd < 15 else " lgkmcnt(0)"
            if hd == 0: lg = " lgkmcnt(0)"
            a(f"s_waitcnt vmcnt({n}){lg}")
            st = hd % 8
            for nt in range(4):
                c = "0" if hd == 0 else vr(ACC+4*nt,4)
                a(f"{MFMA16} {vr(ACC+4*nt,4)}, {vr(WF+16*st+4*nt,4)}, {vr(OF+4*hd,4)}, {c}")
            if hd < 8:
                if hd: a("s_waitcnt lgkmcnt(4)")
                reads(hd + 8)
        a("s_nop 4")
        for nt in range(4):
            a(f"v_cvt_pk_bf16_f32 v{dst+2*nt}, v{ACC+4*nt}, v{ACC+4*nt+1}")
            a(f"v_cvt_pk_bf16_f32 v{dst+2*nt+1}, v{ACC+4*nt+2}, v{ACC+4*nt+3}")
    def out_store(src, tmp, vg, rowstep):
        for nt in range(4):
            a(f"ds_write_b64 v{VTW}, {vr(src+2*nt,2)} offset:{nt*32}")
        a(f"s_movk_i32 s34, {8*rowstep}")
        a("s_waitcnt lgkmcnt(0)")
        a(f"ds_read_b128 {vr(tmp,4)}, v{VTRD}")
        a(f"ds_read_b128 {vr(tmp+4,4)}, v{VTRD} offset:{8*144}")
        a("s_waitcnt lgkmcnt(1)")
        a(f"buffer_store_dwordx4 {vr(tmp,4)}, v{vg}, s[{SOUT}:{SOUT+3}], 0 offen")
        a("s_waitcnt lgkmcnt(0)")
        a(f"buffer_store_dwordx4 {vr(tmp+4,4)}, v{vg}, s[{SOUT}:{SOUT+3}], s34 offen")
    if PROF: stamp(a, 2)
    a("s_mov_b64 exec, 0xffff")
    a(f"buffer_load_dword v{T0}, v{VFL}, {W}, s{S_FL} offen sc0 sc1")
    a("s_mov_b64 exec, -1")
    wo_dma(0)
    a(f"s_mov_b32 s{SWO}, s48")
    a(f"s_and_b32 s{SWO+1}, s49, 0xffff")
    wo_dma(1)
    a("s_waitcnt vmcnt(28)")
    a(f"v_cmp_eq_u32 vcc, 1, v{T0}")
    a("s_nop 1")
    a("s_and_b32 s36, vcc_lo, 0xffff")
    a("s_cmp_eq_u32 s36, 0xffff")
    a("s_cbranch_scc1 L_k2_Aok")
    poll("A")
    a.label("L_k2_Aok")
    oloads()
    a("s_waitcnt vmcnt(16)")
    if PROF: stamp(a, 7)
    a("s_barrier")
    a("s_setprio 0")
    if PROF: stamp(a, 6)
    preload()
    gemm(False, PKA)
    if PROF: stamp(a, 3)
    for e in range(8):
        a(f"v_add_u32 v{VT+e}, {WOSZ}, v{VT+e}")
    a(f"s_add_u32 s{S_OLD}, s{S_OLD}, 0x200000")
    a(f"s_add_u32 s{S_FL}, s{S_FL}, 8192")
    a("s_mov_b64 exec, 0xffff")
    a(f"buffer_load_dword v{T2}, v{VFL}, {W}, s{S_FL} offen sc0 sc1")
    a("s_mov_b64 exec, -1")
    preload()
    a("s_mov_b64 exec, 0xffff")
    a("s_mov_b32 s35, 0")
    a.label("L_k2_pollB")
    for r0, r1 in ((T3, T2), (T2, T3)):
        a(f"buffer_load_dword v{r0}, v{VFL}, {W}, s{S_FL} offen sc0 sc1")
        a("s_waitcnt vmcnt(1)")
        a(f"v_cmp_eq_u32 vcc, 1, v{r1}")
        a("s_add_u32 s35, s35, 1")
        a("s_cmp_eq_u64 vcc, exec")
        a("s_cbranch_scc1 L_k2_goB")
        if SLEEP2: a(f"s_sleep {SLEEP2}")
    a("s_cmp_lt_u32 s35, 0x80000")
    a("s_cbranch_scc1 L_k2_pollB")
    a.label("L_k2_goB")
    a("s_mov_b64 exec, -1")
    if PROF: stamp(a, 4)
    for hd in range(8): oload(hd)
    a("s_barrier")
    out_store(PKA, ACC, VGA, 3584)
    if FINE == 3: stamp(a, 1)
    gemm(True, PKA)
    if FINE == 3: stamp(a, 2)
    out_store(PKA, ACC, VGB, 1792)
    if FINE == 3: stamp(a, 7)
    if PROF:
        a("s_waitcnt vmcnt(0)")
        stamp(a, 5)
        a("s_add_u32 s2, s2, 256")
        stamp_flush(a, 8, S_AW, tmp=104)
    a.label("L_k2_end")
    a("s_endpgm")
    return a.text() + descriptor(name, 252, 252, 102), (name, 256, 512, LDS_TOTAL)

HEAD = """; Kernarg layout (72 bytes): A_x@0 A_wqkv@8 A_wo@16 B_x@24 B_wqkv@32 B_wo@40 d_out@48 d_debug@56 d_ws@64
"""
def build(path, **kw):
    parts = [k1(), k2()]
    s = HEAD
    for _, (n, g, b, l) in parts:
        s += f"; @launch kernel={n} grid=({g},1,1) block=({b},1,1) lds={l}\n"
    s += '.amdgcn_target "amdgcn-amd-amdhsa--gfx950"\n'
    for t, _ in parts:
        s += t
    open(path, "w").write(s)

if __name__ == "__main__":
    out = sys.argv[1] if len(sys.argv) > 1 else f"cdna_kernels/{NAME}.s"
    build(out)
```

```python
import sys
def kernel(name, body, iters=64, vgpr=128, pre=""):
    s = f"""
.text
.globl {name}
.p2align 8
.type {name},@function
{name}:
    s_load_dwordx2 s[4:5], s[0:1], 0
    s_load_dwordx2 s[6:7], s[0:1], 8
    v_lshrrev_b32 v1, 6, v0
    s_nop 1
    v_readfirstlane_b32 s8, v1
    s_waitcnt lgkmcnt(0)
"""
    for i in range(2, vgpr):
        s += f"    v_mov_b32 v{i}, 0.5\n"
    s += pre
    s += f"""
    s_barrier
    s_memtime s[10:11]
    s_waitcnt lgkmcnt(0)
    s_mov_b32 s9, {iters}
L_{name}:
{body}
    s_sub_u32 s9, s9, 1
    s_cmp_lg_u32 s9, 0
    s_cbranch_scc1 L_{name}
    s_nop 15
    s_nop 15
    s_memtime s[12:13]
    s_waitcnt lgkmcnt(0)
    s_sub_u32 s12, s12, s10
    s_subb_u32 s13, s13, s11
    s_mul_i32 s15, s2, NW_{name}
    s_add_u32 s15, s15, s8
    s_lshl_b32 s15, s15, 3
    v_mov_b32 v2, s15
    v_mov_b32 v4, s12
    v_mov_b32 v5, s13
    v_cmp_eq_u32 vcc, 0, v0
    v_and_b32 v3, 63, v0
    v_cmp_eq_u32 vcc, 0, v3
    s_and_saveexec_b64 s[16:17], vcc
    global_store_dwordx2 v2, v[4:5], s[4:5]
    s_endpgm
.section .rodata,"a"
.p2align 6
.amdhsa_kernel {name}
  .amdhsa_next_free_vgpr {vgpr}
  .amdhsa_next_free_sgpr 32
  .amdhsa_accum_offset {vgpr}
  .amdhsa_group_segment_fixed_size 0
  .amdhsa_kernarg_size 16
  .amdhsa_user_sgpr_count 2
  .amdhsa_user_sgpr_kernarg_segment_ptr 1
  .amdhsa_system_sgpr_workgroup_id_x 1
.end_amdhsa_kernel
"""
    return s
def meta(names):
    s = ".amdgpu_metadata\n---\namdhsa.version: [1, 2]\namdhsa.kernels:\n"
    for n, vg in names:
        s += f"""  - .name: {n}
    .symbol: {n}.kd
    .kernarg_segment_size: 16
    .kernarg_segment_align: 8
    .group_segment_fixed_size: 0
    .private_segment_fixed_size: 0
    .wavefront_size: 64
    .sgpr_count: 32
    .vgpr_count: {vg}
    .max_flat_workgroup_size: 1024
    .args:
      - {{.name: kernargs, .size: 16, .offset: 0, .value_kind: by_value}}
"""
    s += "...\n.end_amdgpu_metadata\n"
    return s

def build(kernels, path):
    out = '.amdgcn_target "amdgcn-amd-amdhsa--gfx950"\n'
    names = []
    for (name, body, nw, iters, vgpr, pre) in kernels:
        out += f".set NW_{name}, {nw}\n"
        out += kernel(name, body, iters, vgpr, pre)
        names.append((name, vgpr))
    out += meta(names)
    open(path, "w").write(out)
```

```python
def kernel(name, body, nw, iters=64, vgpr=128, pre=""):
    s = f"""
.text
.globl {name}
.p2align 8
.type {name},@function
{name}:
    s_load_dwordx2 s[4:5], s[0:1], 0
    s_load_dwordx2 s[6:7], s[0:1], 8
    v_lshrrev_b32 v1, 6, v0
    s_nop 1
    v_readfirstlane_b32 s8, v1
    v_lshlrev_b32 v2, 4, v0
    s_waitcnt lgkmcnt(0)
"""
    for i in range(4, vgpr, 4):
        s += f"    global_load_dwordx4 v[{i}:{i+3}], v2, s[6:7]\n    v_add_u32 v2, 0x4000, v2\n"
    s += "    s_waitcnt vmcnt(0)\n"
    s += pre
    s += f"""
    s_barrier
    s_memtime s[10:11]
    s_memrealtime s[18:19]
    s_waitcnt lgkmcnt(0)
    s_mov_b32 s9, {iters}
L_{name}:
{body}
    s_sub_u32 s9, s9, 1
    s_cmp_lg_u32 s9, 0
    s_cbranch_scc1 L_{name}
    s_nop 15
    s_nop 15
    s_memtime s[12:13]
    s_memrealtime s[20:21]
    s_waitcnt lgkmcnt(0)
    s_sub_u32 s12, s12, s10
    s_sub_u32 s13, s20, s18
    s_mul_i32 s15, s2, {nw}
    s_add_u32 s15, s15, s8
    s_lshl_b32 s15, s15, 3
    v_mov_b32 v2, s15
    v_mov_b32 v4, s12
    v_mov_b32 v5, s13
    v_and_b32 v3, 63, v0
    v_cmp_eq_u32 vcc, 0, v3
    s_and_saveexec_b64 s[16:17], vcc
    global_store_dwordx2 v2, v[4:5], s[4:5]
    s_endpgm
.section .rodata,"a"
.p2align 6
.amdhsa_kernel {name}
  .amdhsa_next_free_vgpr {vgpr}
  .amdhsa_next_free_sgpr 32
  .amdhsa_accum_offset {vgpr}
  .amdhsa_group_segment_fixed_size 0
  .amdhsa_kernarg_size 16
  .amdhsa_user_sgpr_count 2
  .amdhsa_user_sgpr_kernarg_segment_ptr 1
  .amdhsa_system_sgpr_workgroup_id_x 1
.end_amdhsa_kernel
"""
    return s
from gen_mb import meta
def build(kernels, path):
    out = '.amdgcn_target "amdgcn-amd-amdhsa--gfx950"\n'
    names = []
    for (name, body, nw, iters, vgpr, pre) in kernels:
        out += kernel(name, body, nw, iters, vgpr, pre)
        names.append((name, vgpr))
    out += meta(names)
    open(path, "w").write(out)
```

```python
from gen_mb2 import *
ks = []; runs = []
def add(name, body, nw=8, iters=7, vgpr=128, pre=""):
    ks.append((name, body, nw, iters, vgpr, pre)); runs.append(f"{name} 256 {nw*64} 65536")
pre = "    v_lshlrev_b32 v2, 4, v0\n" + "".join(f"    ds_write_b128 v2, v[{4+4*i}:{7+4*i}] offset:{i*8192}\n" for i in range(8)) + "    s_waitcnt lgkmcnt(0)\n    v_and_b32 v3, 63, v0\n    v_lshlrev_b32 v2, 4, v3\n    v_lshlrev_b32 v3, 3, v3\n"
def k32():
    s = ""
    for n in range(4):
        st = n % 2
        s += f"    ds_read_b128 v[{80+4*st}:{83+4*st}], v2 offset:{n*1024}\n"
        for j in range(6):
            s += f"    ds_read_b64_tr_b16 v[{88+12*st+2*j}:{89+12*st+2*j}], v3 offset:{8192+n*4096+j*512}\n"
        s += "    s_waitcnt lgkmcnt(7)\n"
        o = 1 - st
        for seg in range(3):
            s += f"    v_mfma_f32_32x32x16_bf16 v[{32+16*seg}:{47+16*seg}], v[{88+12*o+4*seg}:{91+12*o+4*seg}], v[{80+4*o}:{83+4*o}], v[{32+16*seg}:{47+16*seg}]\n"
    return s
def k16(inter):
    s = ""
    for n in range(2):
        st = n % 2
        b = 80 if st == 0 else 0 + 4
        rd = [f"    ds_read_b128 v[{b+4*i}:{b+3+4*i}], v2 offset:{n*2048+i*1024}\n" for i in range(2)]
        rd += [f"    ds_read_b64_tr_b16 v[{b+8+2*j}:{b+9+2*j}], v3 offset:{8192+n*8192+j*512}\n" for j in range(12)]
        o = 4 if st == 0 else 80
        s += "    s_waitcnt lgkmcnt(0)\n"
        k = 0
        for j in range(6):
            for i in range(2):
                d = 32 + 8*j + 4*i
                s += f"    v_mfma_f32_16x16x32_bf16 v[{d}:{d+3}], v[{o+8+4*j}:{o+11+4*j}], v[{o+4*i}:{o+3+4*i}], v[{d}:{d+3}]\n"
                for _ in range(inter):
                    if rd: s += rd.pop(0)
        s += "".join(rd)
    return s
z = "".join(f"    v_mov_b32 v{32+i}, 0\n" for i in range(48))
add("k32", k32(), pre=pre + z)
add("k16i2", k16(2), pre=pre + z)
add("k16i3", k16(3), pre=pre + z)
add("k16i14", k16(14), pre=pre + z)
add("k32b", k32(), pre=pre + z)
build(ks, "mb12.s")
open("mb12.run", "w").write(" ".join(runs))
```

```python
from gen_mb2 import *
import mb12
ks = []; runs = []
def add(name, body, nw=8, iters=7, vgpr=128, pre=""):
    ks.append((name, body, nw, iters, vgpr, pre)); runs.append(f"{name} 256 {nw*64} 65536")
m = 0
for l in range(64):
    if ((l >> 4) & 1) == 1 and (l & 3) == 3: m |= 1 << l
oob = f"    s_mov_b32 exec_lo, 0x{m & 0xffffffff:x}\n    s_mov_b32 exec_hi, 0x{m >> 32:x}\n    v_mov_b32 v3, 0x100000\n    s_mov_b64 exec, -1\n"
add("k32", mb12.k32(), pre=mb12.pre + mb12.z)
add("k32z", mb12.k32(), pre=mb12.pre + mb12.z + oob)
add("k32b", mb12.k32(), pre=mb12.pre + mb12.z)
add("k32zb", mb12.k32(), pre=mb12.pre + mb12.z + oob)
build(ks, "mb13.s")
open("mb13.run", "w").write(" ".join(runs))
```
